```python
import torch

def _softmax(x, axis=-1):
    return torch.softmax(x, dim=axis)
def _gelu(x):
    return torch.nn.functional.gelu(x, approximate="tanh")
def _silu(x):
    return torch.nn.functional.silu(x)
def _sigmoid(x):
    return torch.sigmoid(x)
def _layernorm(x, axis=-1, eps=1e-5):
    m = x.mean(dim=axis, keepdim=True)
    v = x.var(dim=axis, keepdim=True, unbiased=False)
    return (x - m) / torch.sqrt(v + eps)
def _scatter_add(tgt, idx, src, axis=0):
    return tgt.clone().index_add_(axis, idx, src)
def _segment_sum(src, seg, n):
    out = torch.zeros((n,) + src.shape[1:], dtype=src.dtype)
    return out.index_add_(0, seg, src)
def _pad(x, pw):
    flat = tuple(v for pair in reversed(pw) for v in pair)
    return torch.nn.functional.pad(x, flat)

kernel_name = 'parallel_sum__sliding_local_dilated__glu_gated_reglu__prompt'

def setup_inputs():

    _w = (lambda a: (lambda t: t.to(torch.bfloat16) if t.is_floating_point() else t)(torch.as_tensor(a)))
    def _A_setup():
        B, S, D = 1, 2048, 640
        return {
            "x": _w((lambda *s: torch.randn(*s, dtype=torch.bfloat16) * 0.05)(B, S, D)),
            "wqkv": _w((lambda *s: torch.randn(*s, dtype=torch.bfloat16) * 0.05)(D, 3 * D)),
            "wo": _w((lambda *s: torch.randn(*s, dtype=torch.bfloat16) * 0.05)(D, D)),
        }
    _A_in = _A_setup()

    def _B_setup():
        B, S, D, F = 1, 2048, 640, 1728
        return {
            "x": _w((lambda *s: torch.randn(*s, dtype=torch.bfloat16) * 0.05)(B, S, D)),
            "W_gate": _w((lambda *s: torch.randn(*s, dtype=torch.bfloat16) * 0.8)(D, F) * (2.0 / D) ** 0.5),
            "W_up": _w((lambda *s: torch.randn(*s, dtype=torch.bfloat16) * 0.8)(D, F) * (2.0 / D) ** 0.5),
            "W_down": _w((lambda *s: torch.randn(*s, dtype=torch.bfloat16) * 0.8)(F, D) * (1.0 / F) ** 0.5),
        }
    _B_in = _B_setup()

    return {
        "A_x": _A_in["x"],
        "A_wqkv": _A_in["wqkv"],
        "A_wo": _A_in["wo"],
        "B_x": _B_in["x"],
        "B_W_gate": _B_in["W_gate"],
        "B_W_up": _B_in["W_up"],
        "B_W_down": _B_in["W_down"],
    }

def reference(A_x, A_wqkv, A_wo, B_x, B_W_gate, B_W_up, B_W_down):
    def _A_ref(x, wqkv, wo):
        B, S, D = x.shape
        H = 32; Dh = D // H
        W, dil = 8, 2
        qkv = (lambda x, *d: x.permute(*d))((x @ wqkv).reshape(B, S, 3, H, Dh), 2, 0, 3, 1, 4)
        q, k, v = qkv[0], qkv[1], qkv[2]
        scale = Dh ** -0.5
        pos = torch.arange(S)
        off = torch.arange(W) * dil
        idx = pos[:, None] - off[None, :]
        mask = idx >= 0
        idx_c = torch.where(mask, idx, 0).reshape(-1)
        kg = k[:, :, idx_c, :].reshape(B, H, S, W, Dh)
        vg = v[:, :, idx_c, :].reshape(B, H, S, W, Dh)
        logits = torch.einsum("bhsd,bhswd->bhsw", q, kg) * scale
        logits = torch.where(mask[None, None, :, :], logits, -1e9)
        attn = _softmax(logits, axis=-1)
        o = torch.einsum("bhsw,bhswd->bhsd", attn, vg)
        return (lambda x, *d: x.permute(*d))(o, 0, 2, 1, 3).reshape(B, S, D) @ wo

    def _B_ref(x, W_gate, W_up, W_down):
        gate = torch.einsum("bsd,df->bsf", x, W_gate)
        up = torch.einsum("bsd,df->bsf", x, W_up)
        gate = gate * (lambda x, dt: x.to(dt))(gate > 0, gate.dtype)
        h = gate * up
        return torch.einsum("bsf,fd->bsd", h, W_down)

    x = A_x
    xn = _layernorm(x, axis=-1)
    return x + _A_ref(xn, A_wqkv, A_wo) + _B_ref(xn, B_W_gate, B_W_up, B_W_down)
```

```python
import sys

S, D, F3, FF = 2048, 640, 1920, 1728
KT1 = 20
KT2 = 74
XNP = 0x0
W1P = 0x400000
W2P = 0xC00000
QKV = 0x1000000
A2P = 0x2000000

out = []


def E(s=""):
    out.append(s)


def I(s):
    out.append("    " + s)


def L(s):
    out.append(s + ":")


def kernel_header(name):
    E(".p2align 8")
    E(f".globl {name}")
    E(f".type {name},@function")
    L(name)


descs = []


def kernel_desc(name, vgpr, sgpr=102):
    v = (vgpr + 3) // 4 * 4
    descs.append(f""".amdhsa_kernel {name}
  .amdhsa_next_free_vgpr {vgpr}
  .amdhsa_next_free_sgpr {sgpr}
  .amdhsa_accum_offset {v}
  .amdhsa_group_segment_fixed_size 0
  .amdhsa_kernarg_size 80
  .amdhsa_user_sgpr_count 2
  .amdhsa_user_sgpr_kernarg_segment_ptr 1
  .amdhsa_system_sgpr_workgroup_id_x 1
.end_amdhsa_kernel""")


def add64(sdst, ssrc, imm):
    I(f"s_add_u32 s{sdst}, s{ssrc}, {imm:#x}")
    I(f"s_addc_u32 s{sdst+1}, s{ssrc+1}, 0")


def add64s(sdst, ssrc, sreg):
    I(f"s_add_u32 s{sdst}, s{ssrc}, s{sreg}")
    I(f"s_addc_u32 s{sdst+1}, s{ssrc+1}, 0")


K1_LN = 128
K1_SEG = [
]
K1_GRID = 128 + 80 * 3 + 40 + 108


def repack_body(tag, src_sreg, N, C8, kind, tbase):
    rowb = N * 2
    if kind == "w1":
        I(f"v_cmp_gt_u32 vcc, {C8}, v0")
        I("s_and_saveexec_b64 s[30:31], vcc")
        I(f"s_cbranch_execz L_k1_end")
        I("v_mov_b32 v1, v0")
        I(f"s_mul_i32 s21, s20, {8*rowb}")
        add64s(22, src_sreg, 21)
        I("v_lshlrev_b32 v2, 4, v1")
    else:
        I("v_cmp_gt_u32 vcc, 160, v0")
        I("s_and_saveexec_b64 s[30:31], vcc")
        I(f"s_cbranch_execz L_k1_end")
        I("v_cmp_le_u32 vcc, 80, v0")
        I("s_nop 1")
        I("v_cndmask_b32 v3, 0, 1, vcc")
        I("v_mul_u32_u24 v4, 80, v3")
        I("v_sub_u32 v1, v0, v4")
        I(f"s_mul_i32 s21, s20, {16*rowb}")
        add64s(22, src_sreg, 21)
        I(f"v_mul_u32_u24 v4, {8*rowb}, v3")
        I("v_lshlrev_b32 v2, 4, v1")
        I("v_add_u32 v2, v2, v4")
    for j in range(8):
        I(f"global_load_dwordx4 v[{8+4*j}:{11+4*j}], v2, s[22:23]")
        if j < 7:
            I(f"s_add_u32 s22, s22, {rowb}")
            I("s_addc_u32 s23, s23, 0")
    if kind == "w1":
        mult = 2 if tag == "qkv" else 4
        I("v_lshrrev_b32 v4, 2, v1")
        I(f"v_mul_u32_u24 v4, {mult*KT1*1024}, v4")
        I("v_and_b32 v5, 3, v1")
        I("v_lshlrev_b32 v5, 6, v5")
        I("v_add_u32 v4, v4, v5")
        I(f"v_add_u32 v5, {KT1*1024}, v4")
        I("s_lshr_b32 s21, s20, 2")
        I("s_lshl_b32 s21, s21, 10")
        I("s_and_b32 s24, s20, 3")
        I("s_lshl_b32 s24, s24, 8")
        I("s_add_u32 s21, s21, s24")
        add64(24, 18, W1P + tbase * KT1 * 1024)
        add64s(24, 24, 21)
    else:
        I(f"s_lshl_b32 s21, s20, 1")
        I(f"s_add_u32 s21, s21, {tbase}")
        I("v_add_u32 v6, s21, v3")
        I("v_lshrrev_b32 v4, 1, v1")
        I(f"v_mul_u32_u24 v4, {KT2*1024}, v4")
        I("v_lshrrev_b32 v5, 2, v6")
        I("v_lshlrev_b32 v5, 10, v5")
        I("v_add_u32 v4, v4, v5")
        I("v_and_b32 v5, 3, v6")
        I("v_lshlrev_b32 v5, 8, v5")
        I("v_add_u32 v4, v4, v5")
        I("v_and_b32 v5, 1, v1")
        I("v_lshlrev_b32 v5, 7, v5")
        I("v_add_u32 v4, v4, v5")
        add64(24, 18, W2P)
    I("s_mov_b32 s26, 0x05040100")
    I("s_mov_b32 s27, 0x07060302")
    I("s_waitcnt vmcnt(0)")
    for ci in range(8):
        d, e = ci >> 1, ci & 1
        for dd in range(4):
            r0 = 8 + 4 * (2 * dd) + d
            r1 = 8 + 4 * (2 * dd + 1) + d
            I(f"v_perm_b32 v{40+dd}, v{r1}, v{r0}, s{26+e}")
        if kind == "w1":
            vaddr = "v4" if ci < 4 else "v5"
            I(f"global_store_dwordx4 {vaddr}, v[40:43], s[24:25] offset:{(ci&3)*16}")
        else:
            I(f"global_store_dwordx4 v4, v[40:43], s[24:25] offset:{ci*16}")
        I("s_nop 1")
    I("s_branch L_k1_end")


def gen_k1():
    name = "k1_prep_kernel"
    kernel_header(name)
    I(f"s_cmp_ge_u32 s2, {K1_GRID}")
    I("s_cbranch_scc1 L_k1_end")
    I("s_load_dwordx4 s[4:7], s[0:1], 0")
    I("s_load_dwordx2 s[8:9], s[0:1], 16")
    I("s_load_dwordx4 s[12:15], s[0:1], 32")
    I("s_load_dwordx2 s[16:17], s[0:1], 48")
    I("s_load_dwordx2 s[18:19], s[0:1], 72")
    I("s_waitcnt lgkmcnt(0)")
    I("s_cmp_lt_u32 s2, 128")
    I("s_cbranch_scc1 L_k1_ln")
    I("s_sub_u32 s20, s2, 128")
    I("s_cmp_lt_u32 s20, 80")
    I("s_cbranch_scc1 L_k1_qkv")
    I("s_sub_u32 s20, s20, 80")
    I("s_cmp_lt_u32 s20, 80")
    I("s_cbranch_scc1 L_k1_g")
    I("s_sub_u32 s20, s20, 80")
    I("s_cmp_lt_u32 s20, 80")
    I("s_cbranch_scc1 L_k1_u")
    I("s_sub_u32 s20, s20, 80")
    I("s_cmp_lt_u32 s20, 40")
    I("s_cbranch_scc1 L_k1_wo")
    I("s_sub_u32 s20, s20, 40")
    I("s_branch L_k1_wd")
    L("L_k1_qkv")
    repack_body("qkv", 6, F3, 240, "w1", 0)
    L("L_k1_g")
    repack_body("g", 12, FF, 216, "w1", 120)
    L("L_k1_u")
    repack_body("u", 14, FF, 216, "w1", 122)
    L("L_k1_wo")
    repack_body("wo", 8, D, 80, "w2", 0)
    L("L_k1_wd")
    repack_body("wd", 16, D, 80, "w2", 80)

    L("L_k1_ln")
    I("v_and_b32 v1, 63, v0")
    I("v_lshrrev_b32 v2, 6, v0")
    I("v_and_b32 v3, 15, v1")
    I("v_lshrrev_b32 v4, 4, v1")
    I("v_mul_u32_u24 v5, 1280, v3")
    I("v_mul_u32_u24 v6, 320, v2")
    I("v_add_u32 v5, v5, v6")
    I("v_lshlrev_b32 v6, 4, v4")
    I("v_add_u32 v5, v5, v6")
    I(f"s_mul_i32 s20, s2, {16*1280}")
    add64s(22, 4, 20)
    for t in range(5):
        I(f"global_load_dwordx4 v[{8+4*t}:{11+4*t}], v5, s[22:23] offset:{64*t}")
    I("s_waitcnt vmcnt(0)")
    for t in range(20):
        I(f"v_lshlrev_b32 v{28+2*t}, 16, v{8+t}")
        I(f"v_and_b32 v{29+2*t}, 0xffff0000, v{8+t}")
    I("v_add_f32 v68, v28, v29")
    for t in range(2, 40):
        I(f"v_add_f32 v68, v68, v{28+t}")
    I("v_lshlrev_b32 v6, 6, v3")
    I("v_lshlrev_b32 v7, 4, v2")
    I("v_add_u32 v6, v6, v7")
    I("v_lshlrev_b32 v7, 2, v4")
    I("v_add_u32 v6, v6, v7")
    I("v_lshlrev_b32 v7, 6, v3")
    I("ds_write_b32 v6, v68")
    I("s_waitcnt lgkmcnt(0)")
    I("s_barrier")
    for t in range(4):
        I(f"ds_read_b128 v[{72+4*t}:{75+4*t}], v7 offset:{16*t}")
    I("s_waitcnt lgkmcnt(0)")
    I("v_add_f32 v68, v72, v73")
    for t in range(2, 16):
        I(f"v_add_f32 v68, v68, v{72+t}")
    I("v_mul_f32 v69, 0x3acccccd, v68")
    for t in range(40):
        I(f"v_sub_f32 v{28+t}, v{28+t}, v69")
    I("v_mul_f32 v68, v28, v28")
    for t in range(1, 40):
        I(f"v_fmac_f32 v68, v{28+t}, v{28+t}")
    I("ds_write_b32 v6, v68 offset:1024")
    I("s_waitcnt lgkmcnt(0)")
    I("s_barrier")
    for t in range(4):
        I(f"ds_read_b128 v[{72+4*t}:{75+4*t}], v7 offset:{1024+16*t}")
    I("s_waitcnt lgkmcnt(0)")
    I("v_add_f32 v68, v72, v73")
    for t in range(2, 16):
        I(f"v_add_f32 v68, v68, v{72+t}")
    I("v_mov_b32 v70, 0x3727c5ac")
    I("v_fmac_f32 v70, 0x3acccccd, v68")
    I("v_rsq_f32 v70, v70")
    I("s_nop 1")
    for t in range(40):
        I(f"v_mul_f32 v{28+t}, v{28+t}, v70")
    for t in range(20):
        I(f"v_cvt_pk_bf16_f32 v{8+t}, v{28+2*t}, v{29+2*t}")
    I("v_mul_u32_u24 v5, 5120, v2")
    I("v_lshlrev_b32 v6, 4, v1")
    I("v_add_u32 v5, v5, v6")
    I(f"s_mul_i32 s20, s2, {KT1*1024}")
    add64(22, 18, XNP)
    add64s(22, 22, 20)
    for t in range(4):
        I(f"global_store_dwordx4 v5, v[{8+4*t}:{11+4*t}], s[22:23] offset:{1024*t}")
    I("v_add_u32 v5, 4096, v5")
    I("global_store_dwordx4 v5, v[24:27], s[22:23]")
    L("L_k1_end")
    I("s_endpgm")
    kernel_desc(name, 96, 32)


K2_GRID = 16 * 42
K2_NBUF = 2
K2_LDS = K2_NBUF * 32768


def gen_k2():
    name = "k2_gemm1_kernel"
    kernel_header(name)
    I(f"s_cmp_ge_u32 s2, {K2_GRID}")
    I("s_cbranch_scc1 L_k2_end")
    I("s_load_dwordx2 s[18:19], s[0:1], 72")
    I("s_mul_hi_u32 s4, s2, 0x6186187")
    I("s_mul_i32 s5, s4, 42")
    I("s_sub_u32 s5, s2, s5")
    I("v_lshrrev_b32 v1, 6, v0")
    I("v_and_b32 v2, 63, v0")
    I("s_nop 0")
    I("v_readfirstlane_b32 s6, v1")
    I("s_waitcnt lgkmcnt(0)")
    I("s_and_b32 s7, s6, 1")
    I("s_lshr_b32 s8, s6, 1")
    I("s_cmp_lt_u32 s6, 2")
    I("s_cselect_b32 s9, s5, s4")
    I("s_lshl_b32 s9, s9, 3")
    I("s_lshl_b32 s10, s7, 2")
    I("s_add_u32 s9, s9, s10")
    I(f"s_mul_i32 s9, s9, {KT1*1024}")
    I(f"s_mov_b32 s10, {W1P:#x}")
    I("s_cmp_lt_u32 s6, 2")
    I(f"s_cselect_b32 s10, s10, {XNP:#x}")
    I("s_add_u32 s9, s9, s10")
    add64s(12, 18, 9)
    I("s_lshl_b32 s14, s6, 13")
    I("v_lshlrev_b32 v3, 4, v2")
    for i in range(4):
        I(f"v_add_u32 v{4+i}, {i*KT1*1024}, v3")
    I("s_lshl_b32 s15, s7, 13")
    I("v_add_u32 v8, s15, v3")
    I("s_lshl_b32 s15, s8, 13")
    I("s_add_u32 s15, s15, 16384")
    I("v_add_u32 v9, s15, v3")
    if K2_NBUF > 2:
        I("v_add_u32 v10, 0x10000, v8")
        I("v_add_u32 v11, 0x10000, v9")
    ACC = 16
    FR = 80
    NST = 10

    def issue_dma(st):
        buf = st % K2_NBUF
        for i in range(4):
            I(f"s_add_u32 m0, s14, {buf*32768 + i*2048}")
            I("s_nop 0")
            I(f"global_load_lds_dwordx4 v{4+i}, s[12:13]")
            I(f"global_load_lds_dwordx4 v{4+i}, s[12:13] offset:1024")
        I("s_add_u32 s12, s12, 2048")
        I("s_addc_u32 s13, s13, 0")

    def frag_reads(st, kk):
        buf = st % K2_NBUF
        fs = FR + (kk & 1) * 32
        for i in range(4):
            off = buf * 32768 + i * 2048 + kk * 1024
            va, vb = ("v8", "v9") if off < 65536 else ("v10", "v11")
            off &= 0xffff
            I(f"ds_read_b128 v[{fs+4*i}:{fs+4*i+3}], {va} offset:{off}")
            I(f"ds_read_b128 v[{fs+16+4*i}:{fs+16+4*i+3}], {vb} offset:{off}")

    def mfmas(st, kk):
        fs = FR + (kk & 1) * 32
        for i in range(4):
            for j in range(4):
                a = ACC + (i * 4 + j) * 4
                c = "0" if (st == 0 and kk == 0) else f"v[{a}:{a+3}]"
                I(f"v_mfma_f32_16x16x32_bf16 v[{a}:{a+3}], v[{fs+4*i}:{fs+4*i+3}], v[{fs+16+4*j}:{fs+16+4*j+3}], {c}")

    for st in range(min(K2_NBUF - 1, NST)):
        issue_dma(st)
    for st in range(NST):
        rem = min(K2_NBUF - 2, NST - 1 - st)
        I(f"s_waitcnt vmcnt({8*rem})")
        I("s_barrier")
        if st + K2_NBUF - 1 < NST:
            issue_dma(st + K2_NBUF - 1)
        frag_reads(st, 0)
        frag_reads(st, 1)
        I("s_waitcnt lgkmcnt(8)")
        mfmas(st, 0)
        I("s_waitcnt lgkmcnt(0)")
        mfmas(st, 1)
    I("s_nop 7")
    I("s_nop 7")
    I("s_lshl_b32 s20, s4, 3")
    I("s_lshl_b32 s21, s8, 2")
    I("s_add_u32 s20, s20, s21")
    I("s_cmp_lt_u32 s5, 15")
    I("s_cbranch_scc1 L_k2_qkv")
    I("s_sub_u32 s21, s5, 15")
    I("s_lshl_b32 s21, s21, 1")
    I("s_add_u32 s21, s21, s7")
    I("s_add_u32 s21, s21, 20")
    I(f"s_mul_i32 s22, s20, {KT2}")
    I("s_add_u32 s22, s22, s21")
    I("s_lshl_b32 s22, s22, 10")
    add64(24, 18, A2P)
    add64s(24, 24, 22)
    for j in range(4):
        for r in range(8):
            g = ACC + ((r >> 2) * 4 + j) * 4 + (r & 3)
            u = ACC + ((2 + (r >> 2)) * 4 + j) * 4 + (r & 3)
            I(f"v_max_f32 v{FR+r}, 0, v{g}")
            I(f"v_mul_f32 v{FR+r}, v{FR+r}, v{u}")
        for d in range(4):
            I(f"v_cvt_pk_bf16_f32 v{FR+8+d}, v{FR+2*d}, v{FR+2*d+1}")
        I(f"global_store_dwordx4 v3, v[{FR+8}:{FR+11}], s[24:25]")
        I(f"s_add_u32 s24, s24, {KT2*1024}")
        I("s_addc_u32 s25, s25, 0")
    I("s_branch L_k2_end")
    L("L_k2_qkv")
    I("v_and_b32 v10, 15, v2")
    I(f"v_mul_u32_u24 v10, {F3*2}, v10")
    I("v_lshrrev_b32 v11, 4, v2")
    I("v_lshlrev_b32 v11, 4, v11")
    I("v_add_u32 v10, v10, v11")
    I(f"s_mul_i32 s22, s20, {16*F3*2}")
    I("s_lshl_b32 s21, s5, 8")
    I("s_add_u32 s22, s22, s21")
    I("s_lshl_b32 s21, s7, 7")
    I("s_add_u32 s22, s22, s21")
    add64(24, 18, QKV)
    add64s(24, 24, 22)
    for j in range(4):
        for p in range(2):
            for d in range(4):
                t = 2 * p + (d >> 1)
                a = ACC + (t * 4 + j) * 4 + (d & 1) * 2
                I(f"v_cvt_pk_bf16_f32 v{FR+8*p+d}, v{a}, v{a+1}")
            I(f"global_store_dwordx4 v10, v[{FR+8*p}:{FR+8*p+3}], s[24:25] offset:{64*p}")
        I(f"s_add_u32 s24, s24, {16*F3*2}")
        I("s_addc_u32 s25, s25, 0")
    L("L_k2_end")
    I("s_endpgm")
    kernel_desc(name, FR + 64, 32)


K3_GRID = 256


def gen_k3():
    name = "k3_attn_kernel"
    kernel_header(name)
    I(f"s_cmp_ge_u32 s2, {K3_GRID}")
    I("s_cbranch_scc1 L_k3_end")
    I("s_load_dwordx2 s[18:19], s[0:1], 72")
    I("s_lshl_b32 s3, s2, 8")
    I("v_add_u32 v1, s3, v0")
    I("v_lshrrev_b32 v2, 5, v1")
    I("v_and_b32 v3, 31, v1")
    I("v_mul_u32_u24 v4, 40, v3")
    I(f"v_mul_u32_u24 v5, {F3*2}, v2")
    I("v_add_u32 v5, v5, v4")
    I("s_waitcnt lgkmcnt(0)")
    add64(20, 18, QKV)
    Q = 8
    for t in range(5):
        I(f"global_load_dwordx2 v[{Q+2*t}:{Q+2*t+1}], v5, s[20:21] offset:{8*t}")
    KV = 20
    VV = 100
    for w in range(8):
        I(f"v_subrev_u32 v6, {2*w}, v2")
        I("v_max_i32 v6, 0, v6")
        I(f"v_mul_u32_u24 v6, {F3*2}, v6")
        I("v_add_u32 v6, v6, v4")
        for t in range(5):
            I(f"global_load_dwordx2 v[{KV+10*w+2*t}:{KV+10*w+2*t+1}], v6, s[20:21] offset:{1280+8*t}")
        for t in range(5):
            I(f"global_load_dwordx2 v[{VV+10*w+2*t}:{VV+10*w+2*t+1}], v6, s[20:21] offset:{2560+8*t}")
    LG = 180
    I("s_waitcnt vmcnt(0)")
    for w in range(8):
        I(f"v_dot2_f32_bf16 v{LG+w}, v{Q}, v{KV+10*w}, 0")
        for t in range(1, 10):
            I(f"v_dot2_f32_bf16 v{LG+w}, v{Q+t}, v{KV+10*w+t}, v{LG+w}")
    I("s_mov_b32 s4, 0x3ea52ef5")
    I("v_mov_b32 v7, 0xff7fffff")
    for w in range(8):
        I(f"v_mul_f32 v{LG+w}, s4, v{LG+w}")
        if w > 0:
            I(f"v_cmp_le_u32 vcc, {2*w}, v2")
            I("s_nop 1")
            I(f"v_cndmask_b32 v{LG+w}, v7, v{LG+w}, vcc")
    I(f"v_max3_f32 v6, v{LG}, v{LG+1}, v{LG+2}")
    I(f"v_max3_f32 v6, v6, v{LG+3}, v{LG+4}")
    I(f"v_max3_f32 v6, v6, v{LG+5}, v{LG+6}")
    I(f"v_max_f32 v6, v6, v{LG+7}")
    for w in range(8):
        I(f"v_sub_f32 v{LG+w}, v{LG+w}, v6")
    for w in range(8):
        I(f"v_exp_f32 v{LG+w}, v{LG+w}")
    I("s_nop 0")
    I(f"v_add_f32 v6, v{LG}, v{LG+1}")
    for w in range(2, 8):
        I(f"v_add_f32 v6, v6, v{LG+w}")
    I("v_rcp_f32 v6, v6")
    I("s_nop 0")
    for w in range(8):
        I(f"v_mul_f32 v{LG+w}, v{LG+w}, v6")
    O = 20
    for w in range(8):
        for t in range(10):
            I(f"v_lshlrev_b32 v6, 16, v{VV+10*w+t}")
            I(f"v_and_b32 v7, 0xffff0000, v{VV+10*w+t}")
            if w == 0:
                I(f"v_mul_f32 v{O+2*t}, v{LG}, v6")
                I(f"v_mul_f32 v{O+2*t+1}, v{LG}, v7")
            else:
                I(f"v_fmac_f32 v{O+2*t}, v{LG+w}, v6")
                I(f"v_fmac_f32 v{O+2*t+1}, v{LG+w}, v7")
    for t in range(10):
        I(f"v_cvt_pk_bf16_f32 v{40+t}, v{O+2*t}, v{O+2*t+1}")
    add64(20, 18, A2P)
    I("v_lshrrev_b32 v6, 4, v2")
    I(f"v_mul_u32_u24 v6, {KT2*1024}, v6")
    I("v_and_b32 v7, 15, v2")
    I("v_lshlrev_b32 v7, 4, v7")
    I("v_add_u32 v6, v6, v7")
    I("v_mul_u32_u24 v4, 20, v3")
    for g in range(5):
        I(f"v_add_u32 v7, {4*g}, v4")
        I("v_lshrrev_b32 v50, 5, v7")
        I("v_lshlrev_b32 v50, 10, v50")
        I("v_bfe_u32 v51, v7, 3, 2")
        I("v_lshlrev_b32 v51, 8, v51")
        I("v_add3_u32 v50, v50, v51, v6")
        I("v_and_b32 v51, 4, v7")
        I("v_lshlrev_b32 v51, 1, v51")
        I("v_add_u32 v50, v50, v51")
        I(f"global_store_dwordx2 v50, v[{40+2*g}:{41+2*g}], s[20:21]")
        I("s_nop 1")
    L("L_k3_end")
    I("s_endpgm")
    kernel_desc(name, 192, 32)


K4_GRID = 256
K4_LDS = 4 * 20480
K4_DEPTH = 3


def gen_k4():
    name = "k4_gemm2_kernel"
    kernel_header(name)
    I(f"s_cmp_ge_u32 s2, {K4_GRID}")
    I("s_cbranch_scc1 L_k4_end")
    I("s_load_dwordx2 s[18:19], s[0:1], 72")
    I("s_load_dwordx2 s[20:21], s[0:1], 0")
    I("s_load_dwordx2 s[22:23], s[0:1], 56")
    I("s_lshr_b32 s4, s2, 3")
    I("s_and_b32 s5, s2, 7")
    I("v_lshrrev_b32 v1, 6, v0")
    I("v_and_b32 v2, 63, v0")
    I("s_nop 0")
    I("v_readfirstlane_b32 s6, v1")
    I("v_lshlrev_b32 v3, 4, v2")
    for i in range(5):
        I(f"v_add_u32 v{4+i}, {i*KT2*1024}, v3")
    for j in range(4):
        I(f"v_add_u32 v{9+j}, {j*KT2*1024}, v3")
    I("s_waitcnt lgkmcnt(0)")
    I(f"s_mul_i32 s7, s5, {5*KT2}")
    I("s_add_u32 s7, s7, s6")
    I("s_lshl_b32 s7, s7, 10")
    add64(8, 18, W2P)
    add64s(8, 8, 7)
    I(f"s_mul_i32 s7, s4, {4*KT2}")
    I("s_add_u32 s7, s7, s6")
    I("s_lshl_b32 s7, s7, 10")
    add64(10, 18, A2P)
    add64s(10, 10, 7)
    ACC = 16
    FR = 96
    NSTEP = 19

    def loads(t):
        fs = FR + (t % K4_DEPTH) * 36
        for i in range(5):
            I(f"global_load_dwordx4 v[{fs+4*i}:{fs+4*i+3}], v{4+i}, s[8:9]")
        for j in range(4):
            I(f"global_load_dwordx4 v[{fs+20+4*j}:{fs+20+4*j+3}], v{9+j}, s[10:11]")
        I("s_add_u32 s8, s8, 4096")
        I("s_addc_u32 s9, s9, 0")
        I("s_add_u32 s10, s10, 4096")
        I("s_addc_u32 s11, s11, 0")

    def mf(t):
        fs = FR + (t % K4_DEPTH) * 36
        for i in range(5):
            for j in range(4):
                a = ACC + (i * 4 + j) * 4
                c = "0" if t == 0 else f"v[{a}:{a+3}]"
                I(f"v_mfma_f32_16x16x32_bf16 v[{a}:{a+3}], v[{fs+4*i}:{fs+4*i+3}], v[{fs+20+4*j}:{fs+20+4*j+3}], {c}")

    for t in range(K4_DEPTH):
        loads(t)
    for t in range(18):
        rem = min(K4_DEPTH - 1, 17 - t)
        I(f"s_waitcnt vmcnt({9*rem})")
        mf(t)
        if t + K4_DEPTH < 18:
            loads(t + K4_DEPTH)
    I("s_cmp_ge_u32 s6, 2")
    I("s_cbranch_scc1 L_k4_red")
    loads(18)
    I("s_waitcnt vmcnt(0)")
    mf(18)
    L("L_k4_red")
    I("s_nop 7")
    I("s_nop 7")
    I(f"s_mul_i32 s7, s6, 20480")
    I("v_add_u32 v13, s7, v3")
    for t in range(20):
        I(f"ds_write_b128 v13, v[{ACC+4*t}:{ACC+4*t+3}] offset:{1024*t}")
    I("s_waitcnt lgkmcnt(0)")
    I("s_barrier")
    I(f"s_mul_i32 s7, s6, 5120")
    I("v_add_u32 v13, s7, v3")
    I("v_add_u32 v15, 61440, v13")
    for tt in range(5):
        for w in range(4):
            if w < 3:
                I(f"ds_read_b128 v[{ACC+16*tt+4*w}:{ACC+16*tt+4*w+3}], v13 offset:{w*20480+tt*1024}")
            else:
                I(f"ds_read_b128 v[{ACC+16*tt+4*w}:{ACC+16*tt+4*w+3}], v15 offset:{tt*1024}")
    I("v_and_b32 v14, 15, v2")
    I("v_mul_u32_u24 v14, 1280, v14")
    I("v_lshrrev_b32 v15, 4, v2")
    I("v_lshlrev_b32 v15, 3, v15")
    I("v_add_u32 v14, v14, v15")
    I("s_mul_i32 s12, s4, 81920")
    I("s_mul_i32 s13, s5, 160")
    I("s_add_u32 s12, s12, s13")
    RES = 100
    for tt in range(5):
        I(f"s_mul_i32 s13, s6, 5")
        I(f"s_add_u32 s13, s13, {tt}")
        I("s_lshr_b32 s14, s13, 2")
        I("s_and_b32 s15, s13, 3")
        I("s_lshl_b32 s14, s14, 5")
        I("s_mul_i32 s15, s15, 20480")
        I("s_add_u32 s14, s14, s15")
        I("s_add_u32 s14, s14, s12")
        I(f"v_add_u32 v{RES+10+tt}, s14, v14")
        I(f"global_load_dwordx2 v[{RES+2*tt}:{RES+2*tt+1}], v{RES+10+tt}, s[20:21]")
    I("s_waitcnt lgkmcnt(0)")
    for tt in range(5):
        b = ACC + 16 * tt
        for r in range(4):
            I(f"v_add_f32 v{b+r}, v{b+r}, v{b+4+r}")
            I(f"v_add_f32 v{b+8+r}, v{b+8+r}, v{b+12+r}")
        for r in range(4):
            I(f"v_add_f32 v{b+r}, v{b+r}, v{b+8+r}")
    I("s_waitcnt vmcnt(0)")
    for tt in range(5):
        b = ACC + 16 * tt
        for d in range(2):
            I(f"v_lshlrev_b32 v13, 16, v{RES+2*tt+d}")
            I(f"v_and_b32 v15, 0xffff0000, v{RES+2*tt+d}")
            I(f"v_add_f32 v{b+2*d}, v{b+2*d}, v13")
            I(f"v_add_f32 v{b+2*d+1}, v{b+2*d+1}, v15")
        I(f"v_cvt_pk_bf16_f32 v{b+4}, v{b}, v{b+1}")
        I(f"v_cvt_pk_bf16_f32 v{b+5}, v{b+2}, v{b+3}")
        I(f"global_store_dwordx2 v{RES+10+tt}, v[{b+4}:{b+5}], s[22:23]")
    L("L_k4_end")
    I("s_endpgm")
    kernel_desc(name, FR + K4_DEPTH * 36, 32)


header = open("parallel_sum__sliding_local_dilated__glu_gated_reglu__prompt.s.ref").read().split("\n")
hdr = []
for l in header:
    if l.startswith("; Override") or l.startswith("; grid=") or l.startswith("; @launch"):
        continue
    if not l.startswith(";"):
        break
    hdr.append(l)
for l in hdr:
    E(l)
E(f"; @launch kernel=k1_prep_kernel grid=({K1_GRID},1,1) block=(256,1,1) lds=2048")
E(f"; @launch kernel=k2_gemm1_kernel grid=({K2_GRID},1,1) block=(256,1,1) lds={K2_LDS}")
E(f"; @launch kernel=k3_attn_kernel grid=({K3_GRID},1,1) block=(256,1,1) lds=0")
E(f"; @launch kernel=k4_gemm2_kernel grid=({K4_GRID},1,1) block=(256,1,1) lds={K4_LDS}")
E('.amdgcn_target "amdgcn-amd-amdhsa--gfx950"')
E(".text")
gen_k1()
gen_k2()
gen_k3()
gen_k4()
E('.section .rodata,"a"')
E(".p2align 6")
for d in descs:
    E(".p2align 6")
    E(d)
dst = sys.argv[1] if len(sys.argv) > 1 else "parallel_sum__sliding_local_dilated__glu_gated_reglu__prompt.s"
open(dst, "w").write("\n".join(out) + "\n")
```

```python
import sys

S, D, F3, FF = 2048, 640, 1920, 1728
KT1 = 20
KT2 = 74
XNP = 0x0
W1P = 0x400000
W2P = 0xC00000
QKV = 0x1000000
A2P = 0x2000000

out = []


def E(s=""):
    out.append(s)


def I(s):
    out.append("    " + s)


def L(s):
    out.append(s + ":")


def kernel_header(name):
    E(".p2align 8")
    E(f".globl {name}")
    E(f".type {name},@function")
    L(name)


descs = []


def kernel_desc(name, vgpr, sgpr=102):
    v = (vgpr + 3) // 4 * 4
    descs.append(f""".amdhsa_kernel {name}
  .amdhsa_next_free_vgpr {vgpr}
  .amdhsa_next_free_sgpr {sgpr}
  .amdhsa_accum_offset {v}
  .amdhsa_group_segment_fixed_size 0
  .amdhsa_kernarg_size 80
  .amdhsa_user_sgpr_count 2
  .amdhsa_user_sgpr_kernarg_segment_ptr 1
  .amdhsa_system_sgpr_workgroup_id_x 1
.end_amdhsa_kernel""")


def add64(sdst, ssrc, imm):
    I(f"s_add_u32 s{sdst}, s{ssrc}, {imm:#x}")
    I(f"s_addc_u32 s{sdst+1}, s{ssrc+1}, 0")


def add64s(sdst, ssrc, sreg):
    I(f"s_add_u32 s{sdst}, s{ssrc}, s{sreg}")
    I(f"s_addc_u32 s{sdst+1}, s{ssrc+1}, 0")


K1_LN = 128
K1_SEG = [
]
K1_GRID = 128 + 80 * 3 + 40 + 108


def repack_body(tag, src_sreg, N, C8, kind, tbase):
    rowb = N * 2
    if kind == "w1":
        I(f"v_cmp_gt_u32 vcc, {C8}, v0")
        I("s_and_saveexec_b64 s[30:31], vcc")
        I(f"s_cbranch_execz L_k1_end")
        I("v_mov_b32 v1, v0")
        I(f"s_mul_i32 s21, s20, {8*rowb}")
        add64s(22, src_sreg, 21)
        I("v_lshlrev_b32 v2, 4, v1")
    else:
        I("v_cmp_gt_u32 vcc, 160, v0")
        I("s_and_saveexec_b64 s[30:31], vcc")
        I(f"s_cbranch_execz L_k1_end")
        I("v_cmp_le_u32 vcc, 80, v0")
        I("s_nop 1")
        I("v_cndmask_b32 v3, 0, 1, vcc")
        I("v_mul_u32_u24 v4, 80, v3")
        I("v_sub_u32 v1, v0, v4")
        I(f"s_mul_i32 s21, s20, {16*rowb}")
        add64s(22, src_sreg, 21)
        I(f"v_mul_u32_u24 v4, {8*rowb}, v3")
        I("v_lshlrev_b32 v2, 4, v1")
        I("v_add_u32 v2, v2, v4")
    for j in range(8):
        I(f"global_load_dwordx4 v[{8+4*j}:{11+4*j}], v2, s[22:23]")
        if j < 7:
            I(f"s_add_u32 s22, s22, {rowb}")
            I("s_addc_u32 s23, s23, 0")
    if kind == "w1":
        mult = 2 if tag == "qkv" else 4
        I("v_lshrrev_b32 v4, 2, v1")
        I(f"v_mul_u32_u24 v4, {mult*KT1*1024}, v4")
        I("v_and_b32 v5, 3, v1")
        I("v_lshlrev_b32 v5, 6, v5")
        I("v_add_u32 v4, v4, v5")
        I(f"v_add_u32 v5, {KT1*1024}, v4")
        I("s_lshr_b32 s21, s20, 2")
        I("s_lshl_b32 s21, s21, 10")
        I("s_and_b32 s24, s20, 3")
        I("s_lshl_b32 s24, s24, 8")
        I("s_add_u32 s21, s21, s24")
        add64(24, 18, W1P + tbase * KT1 * 1024)
        add64s(24, 24, 21)
    else:
        I(f"s_lshl_b32 s21, s20, 1")
        I(f"s_add_u32 s21, s21, {tbase}")
        I("v_add_u32 v6, s21, v3")
        I("v_lshrrev_b32 v4, 1, v1")
        I(f"v_mul_u32_u24 v4, {KT2*1024}, v4")
        I("v_lshrrev_b32 v5, 2, v6")
        I("v_lshlrev_b32 v5, 10, v5")
        I("v_add_u32 v4, v4, v5")
        I("v_and_b32 v5, 3, v6")
        I("v_lshlrev_b32 v5, 8, v5")
        I("v_add_u32 v4, v4, v5")
        I("v_and_b32 v5, 1, v1")
        I("v_lshlrev_b32 v5, 7, v5")
        I("v_add_u32 v4, v4, v5")
        add64(24, 18, W2P)
    I("s_mov_b32 s26, 0x05040100")
    I("s_mov_b32 s27, 0x07060302")
    I("s_waitcnt vmcnt(0)")
    for ci in range(8):
        d, e = ci >> 1, ci & 1
        for dd in range(4):
            r0 = 8 + 4 * (2 * dd) + d
            r1 = 8 + 4 * (2 * dd + 1) + d
            I(f"v_perm_b32 v{40+dd}, v{r1}, v{r0}, s{26+e}")
        if kind == "w1":
            vaddr = "v4" if ci < 4 else "v5"
            I(f"global_store_dwordx4 {vaddr}, v[40:43], s[24:25] offset:{(ci&3)*16}")
        else:
            I(f"global_store_dwordx4 v4, v[40:43], s[24:25] offset:{ci*16}")
        I("s_nop 1")
    I("s_branch L_k1_end")


def gen_k1():
    name = "k1_prep_kernel"
    kernel_header(name)
    I(f"s_cmp_ge_u32 s2, {K1_GRID}")
    I("s_cbranch_scc1 L_k1_end")
    I("s_load_dwordx4 s[4:7], s[0:1], 0")
    I("s_load_dwordx2 s[8:9], s[0:1], 16")
    I("s_load_dwordx4 s[12:15], s[0:1], 32")
    I("s_load_dwordx2 s[16:17], s[0:1], 48")
    I("s_load_dwordx2 s[18:19], s[0:1], 72")
    I("s_waitcnt lgkmcnt(0)")
    I("s_cmp_lt_u32 s2, 128")
    I("s_cbranch_scc1 L_k1_ln")
    I("s_sub_u32 s20, s2, 128")
    I("s_cmp_lt_u32 s20, 80")
    I("s_cbranch_scc1 L_k1_qkv")
    I("s_sub_u32 s20, s20, 80")
    I("s_cmp_lt_u32 s20, 80")
    I("s_cbranch_scc1 L_k1_g")
    I("s_sub_u32 s20, s20, 80")
    I("s_cmp_lt_u32 s20, 80")
    I("s_cbranch_scc1 L_k1_u")
    I("s_sub_u32 s20, s20, 80")
    I("s_cmp_lt_u32 s20, 40")
    I("s_cbranch_scc1 L_k1_wo")
    I("s_sub_u32 s20, s20, 40")
    I("s_branch L_k1_wd")
    L("L_k1_qkv")
    repack_body("qkv", 6, F3, 240, "w1", 0)
    L("L_k1_g")
    repack_body("g", 12, FF, 216, "w1", 120)
    L("L_k1_u")
    repack_body("u", 14, FF, 216, "w1", 122)
    L("L_k1_wo")
    repack_body("wo", 8, D, 80, "w2", 0)
    L("L_k1_wd")
    repack_body("wd", 16, D, 80, "w2", 80)

    L("L_k1_ln")
    I("v_and_b32 v1, 63, v0")
    I("v_lshrrev_b32 v2, 6, v0")
    I("v_and_b32 v3, 15, v1")
    I("v_lshrrev_b32 v4, 4, v1")
    I("v_mul_u32_u24 v5, 1280, v3")
    I("v_mul_u32_u24 v6, 320, v2")
    I("v_add_u32 v5, v5, v6")
    I("v_lshlrev_b32 v6, 4, v4")
    I("v_add_u32 v5, v5, v6")
    I(f"s_mul_i32 s20, s2, {16*1280}")
    add64s(22, 4, 20)
    for t in range(5):
        I(f"global_load_dwordx4 v[{8+4*t}:{11+4*t}], v5, s[22:23] offset:{64*t}")
    I("s_waitcnt vmcnt(0)")
    for t in range(20):
        I(f"v_lshlrev_b32 v{28+2*t}, 16, v{8+t}")
        I(f"v_and_b32 v{29+2*t}, 0xffff0000, v{8+t}")
    I("v_add_f32 v68, v28, v29")
    for t in range(2, 40):
        I(f"v_add_f32 v68, v68, v{28+t}")
    I("v_lshlrev_b32 v6, 6, v3")
    I("v_lshlrev_b32 v7, 4, v2")
    I("v_add_u32 v6, v6, v7")
    I("v_lshlrev_b32 v7, 2, v4")
    I("v_add_u32 v6, v6, v7")
    I("v_lshlrev_b32 v7, 6, v3")
    I("ds_write_b32 v6, v68")
    I("s_waitcnt lgkmcnt(0)")
    I("s_barrier")
    for t in range(4):
        I(f"ds_read_b128 v[{72+4*t}:{75+4*t}], v7 offset:{16*t}")
    I("s_waitcnt lgkmcnt(0)")
    I("v_add_f32 v68, v72, v73")
    for t in range(2, 16):
        I(f"v_add_f32 v68, v68, v{72+t}")
    I("v_mul_f32 v69, 0x3acccccd, v68")
    for t in range(40):
        I(f"v_sub_f32 v{28+t}, v{28+t}, v69")
    I("v_mul_f32 v68, v28, v28")
    for t in range(1, 40):
        I(f"v_fmac_f32 v68, v{28+t}, v{28+t}")
    I("ds_write_b32 v6, v68 offset:1024")
    I("s_waitcnt lgkmcnt(0)")
    I("s_barrier")
    for t in range(4):
        I(f"ds_read_b128 v[{72+4*t}:{75+4*t}], v7 offset:{1024+16*t}")
    I("s_waitcnt lgkmcnt(0)")
    I("v_add_f32 v68, v72, v73")
    for t in range(2, 16):
        I(f"v_add_f32 v68, v68, v{72+t}")
    I("v_mov_b32 v70, 0x3727c5ac")
    I("v_fmac_f32 v70, 0x3acccccd, v68")
    I("v_rsq_f32 v70, v70")
    I("s_nop 1")
    for t in range(40):
        I(f"v_mul_f32 v{28+t}, v{28+t}, v70")
    for t in range(20):
        I(f"v_cvt_pk_bf16_f32 v{8+t}, v{28+2*t}, v{29+2*t}")
    I("v_mul_u32_u24 v5, 5120, v2")
    I("v_lshlrev_b32 v6, 4, v1")
    I("v_add_u32 v5, v5, v6")
    I(f"s_mul_i32 s20, s2, {KT1*1024}")
    add64(22, 18, XNP)
    add64s(22, 22, 20)
    for t in range(4):
        I(f"global_store_dwordx4 v5, v[{8+4*t}:{11+4*t}], s[22:23] offset:{1024*t}")
    I("v_add_u32 v5, 4096, v5")
    I("global_store_dwordx4 v5, v[24:27], s[22:23]")
    L("L_k1_end")
    I("s_endpgm")
    kernel_desc(name, 96, 32)


K2_GRID = 224
K2_NBUF = 2
K2_STAGE = 56 * 1024
K2_LDS = K2_NBUF * K2_STAGE
K2_BLOCK = 768


def gen_k2():
    name = "k2_gemm1_kernel"
    kernel_header(name)
    I(f"s_cmp_ge_u32 s2, {K2_GRID}")
    I("s_cbranch_scc1 L_k2_end")
    I("s_load_dwordx2 s[18:19], s[0:1], 72")
    I("s_and_b32 s4, s2, 1")
    I("s_lshl_b32 s4, s4, 2")
    I("s_bfe_u32 s5, s2, 0x20003")
    I("s_add_u32 s4, s4, s5")
    I("s_bfe_u32 s5, s2, 0x20001")
    I("s_mul_i32 s5, s5, 7")
    I("s_lshr_b32 s7, s2, 5")
    I("s_add_u32 s5, s5, s7")
    I("v_lshrrev_b32 v1, 6, v0")
    I("v_and_b32 v2, 63, v0")
    I("s_nop 0")
    I("v_readfirstlane_b32 s6, v1")
    I("v_lshlrev_b32 v3, 4, v2")
    I("s_mul_i32 s8, s6, 43")
    I("s_lshr_b32 s8, s8, 7")
    I("s_mul_i32 s7, s8, 3")
    I("s_sub_u32 s7, s6, s7")
    I("s_mul_i32 s9, s6, 5")
    I(f"s_mul_i32 s10, s5, {12*KT1*1024}")
    I(f"s_add_u32 s10, s10, {W1P:#x}")
    I(f"s_mul_i32 s11, s4, {16*KT1*1024}")
    I(f"s_add_u32 s11, s11, {XNP:#x}")
    for i in range(5):
        I(f"s_add_u32 s12, s9, {i}")
        I("s_cmp_ge_u32 s12, 56")
        I("s_cselect_b32 s13, 4, 0")
        I("s_sub_u32 s12, s12, s13")
        I(f"s_lshl_b32 s{24+i}, s12, 10")
        I("s_cmp_lt_u32 s12, 24")
        I("s_cselect_b32 s13, 0, 24")
        I("s_sub_u32 s13, s12, s13")
        I("s_lshr_b32 s14, s13, 1")
        I(f"s_mul_i32 s14, s14, {KT1*1024}")
        I("s_and_b32 s13, s13, 1")
        I("s_lshl_b32 s13, s13, 10")
        I("s_add_u32 s14, s14, s13")
        I("s_cmp_lt_u32 s12, 24")
        I("s_cselect_b32 s13, s10, s11")
        I("s_add_u32 s14, s14, s13")
        I(f"v_add_u32 v{4+i}, s14, v3")
    I("s_waitcnt lgkmcnt(0)")
    I("s_mov_b32 s12, s18")
    I("s_mov_b32 s13, s19")
    I("s_lshl_b32 s15, s7, 13")
    I("v_add_u32 v9, s15, v3")
    I("s_lshl_b32 s15, s8, 13")
    I("s_add_u32 s15, s15, 24576")
    I("v_add_u32 v10, s15, v3")
    I(f"v_add_u32 v11, {K2_STAGE}, v9")
    I(f"v_add_u32 v12, {K2_STAGE}, v10")
    ACC = 16
    FR = 80
    NST = 10

    def issue_dma(st):
        buf = st % K2_NBUF
        for i in range(5):
            I(f"s_add_u32 m0, s{24+i}, {buf*K2_STAGE}")
            I("s_nop 0")
            I(f"global_load_lds_dwordx4 v{4+i}, s[12:13]")
        I("s_add_u32 s12, s12, 2048")
        I("s_addc_u32 s13, s13, 0")

    def frag_reads(st, kk):
        buf = st % K2_NBUF
        fs = FR + (kk & 1) * 32
        va, vb = ("v9", "v10") if buf == 0 else ("v11", "v12")
        for i in range(4):
            off = i * 2048 + kk * 1024
            I(f"ds_read_b128 v[{fs+4*i}:{fs+4*i+3}], {va} offset:{off}")
            I(f"ds_read_b128 v[{fs+16+4*i}:{fs+16+4*i+3}], {vb} offset:{off}")

    def mfmas(st, kk):
        fs = FR + (kk & 1) * 32
        for i in range(4):
            for j in range(4):
                a = ACC + (i * 4 + j) * 4
                c = "0" if (st == 0 and kk == 0) else f"v[{a}:{a+3}]"
                I(f"v_mfma_f32_16x16x32_bf16 v[{a}:{a+3}], v[{fs+4*i}:{fs+4*i+3}], v[{fs+16+4*j}:{fs+16+4*j+3}], {c}")

    issue_dma(0)
    for st in range(NST):
        I("s_waitcnt vmcnt(0)")
        I("s_barrier")
        if st + 1 < NST:
            issue_dma(st + 1)
        frag_reads(st, 0)
        frag_reads(st, 1)
        I("s_waitcnt lgkmcnt(8)")
        mfmas(st, 0)
        I("s_waitcnt lgkmcnt(0)")
        mfmas(st, 1)
    I("s_nop 7")
    I("s_nop 7")
    I("s_lshl_b32 s20, s4, 4")
    I("s_lshl_b32 s21, s8, 2")
    I("s_add_u32 s20, s20, s21")
    I("s_cmp_lt_u32 s5, 10")
    I("s_cbranch_scc1 L_k2_qkv")
    I("s_sub_u32 s21, s5, 10")
    I("s_mul_i32 s21, s21, 3")
    I("s_add_u32 s21, s21, s7")
    I("s_add_u32 s21, s21, 20")
    I(f"s_mul_i32 s22, s20, {KT2}")
    I("s_add_u32 s22, s22, s21")
    I("s_lshl_b32 s22, s22, 10")
    add64(24, 18, A2P)
    add64s(24, 24, 22)
    for j in range(4):
        for r in range(8):
            g = ACC + ((r >> 2) * 4 + j) * 4 + (r & 3)
            u = ACC + ((2 + (r >> 2)) * 4 + j) * 4 + (r & 3)
            I(f"v_max_f32 v{FR+r}, 0, v{g}")
            I(f"v_mul_f32 v{FR+r}, v{FR+r}, v{u}")
        for d in range(4):
            I(f"v_cvt_pk_bf16_f32 v{FR+8+d}, v{FR+2*d}, v{FR+2*d+1}")
        I(f"global_store_dwordx4 v3, v[{FR+8}:{FR+11}], s[24:25]")
        I(f"s_add_u32 s24, s24, {KT2*1024}")
        I("s_addc_u32 s25, s25, 0")
    I("s_branch L_k2_end")
    L("L_k2_qkv")
    I("v_and_b32 v10, 15, v2")
    I(f"v_mul_u32_u24 v10, {F3*2}, v10")
    I("v_lshrrev_b32 v11, 4, v2")
    I("v_lshlrev_b32 v11, 4, v11")
    I("v_add_u32 v10, v10, v11")
    I(f"s_mul_i32 s22, s20, {16*F3*2}")
    I("s_mul_i32 s21, s5, 384")
    I("s_add_u32 s22, s22, s21")
    I("s_lshl_b32 s21, s7, 7")
    I("s_add_u32 s22, s22, s21")
    add64(24, 18, QKV)
    add64s(24, 24, 22)
    for j in range(4):
        for p in range(2):
            for d in range(4):
                t = 2 * p + (d >> 1)
                a = ACC + (t * 4 + j) * 4 + (d & 1) * 2
                I(f"v_cvt_pk_bf16_f32 v{FR+8*p+d}, v{a}, v{a+1}")
            I(f"global_store_dwordx4 v10, v[{FR+8*p}:{FR+8*p+3}], s[24:25] offset:{64*p}")
        I(f"s_add_u32 s24, s24, {16*F3*2}")
        I("s_addc_u32 s25, s25, 0")
    L("L_k2_end")
    I("s_endpgm")
    kernel_desc(name, FR + 64, 32)


K3_GRID = 256


def gen_k3():
    name = "k3_attn_kernel"
    kernel_header(name)
    I(f"s_cmp_ge_u32 s2, {K3_GRID}")
    I("s_cbranch_scc1 L_k3_end")
    I("s_load_dwordx2 s[18:19], s[0:1], 72")
    I("s_and_b32 s3, s2, 7")
    I("s_lshl_b32 s3, s3, 5")
    I("s_lshr_b32 s4, s2, 3")
    I("s_add_u32 s3, s3, s4")
    I("s_lshl_b32 s3, s3, 8")
    I("v_add_u32 v1, s3, v0")
    I("v_lshrrev_b32 v2, 5, v1")
    I("v_and_b32 v3, 31, v1")
    I("v_mul_u32_u24 v4, 40, v3")
    I(f"v_mul_u32_u24 v5, {F3*2}, v2")
    I("v_add_u32 v5, v5, v4")
    I("s_waitcnt lgkmcnt(0)")
    add64(20, 18, QKV)
    Q = 8
    for t in range(5):
        I(f"global_load_dwordx2 v[{Q+2*t}:{Q+2*t+1}], v5, s[20:21] offset:{8*t}")
    KV = 20
    VV = 100
    for w in range(8):
        I(f"v_subrev_u32 v6, {2*w}, v2")
        I("v_max_i32 v6, 0, v6")
        I(f"v_mul_u32_u24 v6, {F3*2}, v6")
        I("v_add_u32 v6, v6, v4")
        for t in range(5):
            I(f"global_load_dwordx2 v[{KV+10*w+2*t}:{KV+10*w+2*t+1}], v6, s[20:21] offset:{1280+8*t}")
        for t in range(5):
            I(f"global_load_dwordx2 v[{VV+10*w+2*t}:{VV+10*w+2*t+1}], v6, s[20:21] offset:{2560+8*t}")
    LG = 180
    I("s_waitcnt vmcnt(0)")
    for w in range(8):
        I(f"v_dot2_f32_bf16 v{LG+w}, v{Q}, v{KV+10*w}, 0")
        for t in range(1, 10):
            I(f"v_dot2_f32_bf16 v{LG+w}, v{Q+t}, v{KV+10*w+t}, v{LG+w}")
    I("s_mov_b32 s4, 0x3ea52ef5")
    I("v_mov_b32 v7, 0xff7fffff")
    for w in range(8):
        I(f"v_mul_f32 v{LG+w}, s4, v{LG+w}")
        if w > 0:
            I(f"v_cmp_le_u32 vcc, {2*w}, v2")
            I("s_nop 1")
            I(f"v_cndmask_b32 v{LG+w}, v7, v{LG+w}, vcc")
    I(f"v_max3_f32 v6, v{LG}, v{LG+1}, v{LG+2}")
    I(f"v_max3_f32 v6, v6, v{LG+3}, v{LG+4}")
    I(f"v_max3_f32 v6, v6, v{LG+5}, v{LG+6}")
    I(f"v_max_f32 v6, v6, v{LG+7}")
    for w in range(8):
        I(f"v_sub_f32 v{LG+w}, v{LG+w}, v6")
    for w in range(8):
        I(f"v_exp_f32 v{LG+w}, v{LG+w}")
    I("s_nop 0")
    I(f"v_add_f32 v6, v{LG}, v{LG+1}")
    for w in range(2, 8):
        I(f"v_add_f32 v6, v6, v{LG+w}")
    I("v_rcp_f32 v6, v6")
    I("s_nop 0")
    for w in range(8):
        I(f"v_mul_f32 v{LG+w}, v{LG+w}, v6")
    O = 20
    for w in range(8):
        for t in range(10):
            I(f"v_lshlrev_b32 v6, 16, v{VV+10*w+t}")
            I(f"v_and_b32 v7, 0xffff0000, v{VV+10*w+t}")
            if w == 0:
                I(f"v_mul_f32 v{O+2*t}, v{LG}, v6")
                I(f"v_mul_f32 v{O+2*t+1}, v{LG}, v7")
            else:
                I(f"v_fmac_f32 v{O+2*t}, v{LG+w}, v6")
                I(f"v_fmac_f32 v{O+2*t+1}, v{LG+w}, v7")
    for t in range(10):
        I(f"v_cvt_pk_bf16_f32 v{40+t}, v{O+2*t}, v{O+2*t+1}")
    add64(20, 18, A2P)
    I("v_lshrrev_b32 v6, 4, v2")
    I(f"v_mul_u32_u24 v6, {KT2*1024}, v6")
    I("v_and_b32 v7, 15, v2")
    I("v_lshlrev_b32 v7, 4, v7")
    I("v_add_u32 v6, v6, v7")
    I("v_mul_u32_u24 v4, 20, v3")
    for g in range(5):
        I(f"v_add_u32 v7, {4*g}, v4")
        I("v_lshrrev_b32 v50, 5, v7")
        I("v_lshlrev_b32 v50, 10, v50")
        I("v_bfe_u32 v51, v7, 3, 2")
        I("v_lshlrev_b32 v51, 8, v51")
        I("v_add3_u32 v50, v50, v51, v6")
        I("v_and_b32 v51, 4, v7")
        I("v_lshlrev_b32 v51, 1, v51")
        I("v_add_u32 v50, v50, v51")
        I(f"global_store_dwordx2 v50, v[{40+2*g}:{41+2*g}], s[20:21]")
        I("s_nop 1")
    L("L_k3_end")
    I("s_endpgm")
    kernel_desc(name, 192, 32)


K4_GRID = 256
K4_LDS = 4 * 20480
K4_DEPTH = 3


def gen_k4():
    name = "k4_gemm2_kernel"
    kernel_header(name)
    I(f"s_cmp_ge_u32 s2, {K4_GRID}")
    I("s_cbranch_scc1 L_k4_end")
    I("s_load_dwordx2 s[18:19], s[0:1], 72")
    I("s_load_dwordx2 s[20:21], s[0:1], 0")
    I("s_load_dwordx2 s[22:23], s[0:1], 56")
    I("s_bfe_u32 s4, s2, 0x20001")
    I("s_lshl_b32 s4, s4, 3")
    I("s_lshr_b32 s5, s2, 5")
    I("s_add_u32 s4, s4, s5")
    I("s_and_b32 s5, s2, 1")
    I("s_lshl_b32 s5, s5, 2")
    I("s_bfe_u32 s7, s2, 0x20003")
    I("s_add_u32 s5, s5, s7")
    I("v_lshrrev_b32 v1, 6, v0")
    I("v_and_b32 v2, 63, v0")
    I("s_nop 0")
    I("v_readfirstlane_b32 s6, v1")
    I("v_lshlrev_b32 v3, 4, v2")
    for i in range(5):
        I(f"v_add_u32 v{4+i}, {i*KT2*1024}, v3")
    for j in range(4):
        I(f"v_add_u32 v{9+j}, {j*KT2*1024}, v3")
    I("s_waitcnt lgkmcnt(0)")
    I(f"s_mul_i32 s7, s5, {5*KT2}")
    I("s_add_u32 s7, s7, s6")
    I("s_lshl_b32 s7, s7, 10")
    add64(8, 18, W2P)
    add64s(8, 8, 7)
    I(f"s_mul_i32 s7, s4, {4*KT2}")
    I("s_add_u32 s7, s7, s6")
    I("s_lshl_b32 s7, s7, 10")
    add64(10, 18, A2P)
    add64s(10, 10, 7)
    ACC = 16
    FR = 96
    NSTEP = 19

    def loads(t):
        fs = FR + (t % K4_DEPTH) * 36
        for i in range(5):
            I(f"global_load_dwordx4 v[{fs+4*i}:{fs+4*i+3}], v{4+i}, s[8:9]")
        for j in range(4):
            I(f"global_load_dwordx4 v[{fs+20+4*j}:{fs+20+4*j+3}], v{9+j}, s[10:11]")
        I("s_add_u32 s8, s8, 4096")
        I("s_addc_u32 s9, s9, 0")
        I("s_add_u32 s10, s10, 4096")
        I("s_addc_u32 s11, s11, 0")

    def mf(t):
        fs = FR + (t % K4_DEPTH) * 36
        for i in range(5):
            for j in range(4):
                a = ACC + (i * 4 + j) * 4
                c = "0" if t == 0 else f"v[{a}:{a+3}]"
                I(f"v_mfma_f32_16x16x32_bf16 v[{a}:{a+3}], v[{fs+4*i}:{fs+4*i+3}], v[{fs+20+4*j}:{fs+20+4*j+3}], {c}")

    for t in range(K4_DEPTH):
        loads(t)
    for t in range(18):
        rem = min(K4_DEPTH - 1, 17 - t)
        I(f"s_waitcnt vmcnt({9*rem})")
        mf(t)
        if t + K4_DEPTH < 18:
            loads(t + K4_DEPTH)
    I("s_cmp_ge_u32 s6, 2")
    I("s_cbranch_scc1 L_k4_red")
    loads(18)
    I("s_waitcnt vmcnt(0)")
    mf(18)
    L("L_k4_red")
    I("s_nop 7")
    I("s_nop 7")
    I(f"s_mul_i32 s7, s6, 20480")
    I("v_add_u32 v13, s7, v3")
    for t in range(20):
        I(f"ds_write_b128 v13, v[{ACC+4*t}:{ACC+4*t+3}] offset:{1024*t}")
    I("s_waitcnt lgkmcnt(0)")
    I("s_barrier")
    I(f"s_mul_i32 s7, s6, 5120")
    I("v_add_u32 v13, s7, v3")
    I("v_add_u32 v15, 61440, v13")
    for tt in range(5):
        for w in range(4):
            if w < 3:
                I(f"ds_read_b128 v[{ACC+16*tt+4*w}:{ACC+16*tt+4*w+3}], v13 offset:{w*20480+tt*1024}")
            else:
                I(f"ds_read_b128 v[{ACC+16*tt+4*w}:{ACC+16*tt+4*w+3}], v15 offset:{tt*1024}")
    I("v_and_b32 v14, 15, v2")
    I("v_mul_u32_u24 v14, 1280, v14")
    I("v_lshrrev_b32 v15, 4, v2")
    I("v_lshlrev_b32 v15, 3, v15")
    I("v_add_u32 v14, v14, v15")
    I("s_mul_i32 s12, s4, 81920")
    I("s_mul_i32 s13, s5, 160")
    I("s_add_u32 s12, s12, s13")
    RES = 100
    for tt in range(5):
        I(f"s_mul_i32 s13, s6, 5")
        I(f"s_add_u32 s13, s13, {tt}")
        I("s_lshr_b32 s14, s13, 2")
        I("s_and_b32 s15, s13, 3")
        I("s_lshl_b32 s14, s14, 5")
        I("s_mul_i32 s15, s15, 20480")
        I("s_add_u32 s14, s14, s15")
        I("s_add_u32 s14, s14, s12")
        I(f"v_add_u32 v{RES+10+tt}, s14, v14")
        I(f"global_load_dwordx2 v[{RES+2*tt}:{RES+2*tt+1}], v{RES+10+tt}, s[20:21]")
    I("s_waitcnt lgkmcnt(0)")
    for tt in range(5):
        b = ACC + 16 * tt
        for r in range(4):
            I(f"v_add_f32 v{b+r}, v{b+r}, v{b+4+r}")
            I(f"v_add_f32 v{b+8+r}, v{b+8+r}, v{b+12+r}")
        for r in range(4):
            I(f"v_add_f32 v{b+r}, v{b+r}, v{b+8+r}")
    I("s_waitcnt vmcnt(0)")
    for tt in range(5):
        b = ACC + 16 * tt
        for d in range(2):
            I(f"v_lshlrev_b32 v13, 16, v{RES+2*tt+d}")
            I(f"v_and_b32 v15, 0xffff0000, v{RES+2*tt+d}")
            I(f"v_add_f32 v{b+2*d}, v{b+2*d}, v13")
            I(f"v_add_f32 v{b+2*d+1}, v{b+2*d+1}, v15")
        I(f"v_cvt_pk_bf16_f32 v{b+4}, v{b}, v{b+1}")
        I(f"v_cvt_pk_bf16_f32 v{b+5}, v{b+2}, v{b+3}")
        I(f"global_store_dwordx2 v{RES+10+tt}, v[{b+4}:{b+5}], s[22:23]")
    L("L_k4_end")
    I("s_endpgm")
    kernel_desc(name, FR + K4_DEPTH * 36, 32)


header = open("parallel_sum__sliding_local_dilated__glu_gated_reglu__prompt.s.ref").read().split("\n")
hdr = []
for l in header:
    if l.startswith("; Override") or l.startswith("; grid=") or l.startswith("; @launch"):
        continue
    if not l.startswith(";"):
        break
    hdr.append(l)
for l in hdr:
    E(l)
E(f"; @launch kernel=k1_prep_kernel grid=({K1_GRID},1,1) block=(256,1,1) lds=2048")
E(f"; @launch kernel=k2_gemm1_kernel grid=({K2_GRID},1,1) block=({K2_BLOCK},1,1) lds={K2_LDS}")
E(f"; @launch kernel=k3_attn_kernel grid=({K3_GRID},1,1) block=(256,1,1) lds=0")
E(f"; @launch kernel=k4_gemm2_kernel grid=({K4_GRID},1,1) block=(256,1,1) lds={K4_LDS}")
E('.amdgcn_target "amdgcn-amd-amdhsa--gfx950"')
E(".text")
gen_k1()
gen_k2()
gen_k3()
gen_k4()
E('.section .rodata,"a"')
E(".p2align 6")
for d in descs:
    E(".p2align 6")
    E(d)
dst = sys.argv[1] if len(sys.argv) > 1 else "parallel_sum__sliding_local_dilated__glu_gated_reglu__prompt.s"
open(dst, "w").write("\n".join(out) + "\n")
```

```python
import sys

S, D, F3, FF = 2048, 640, 1920, 1728
KT1 = 20
KT2 = 74
XNP = 0x0
W1P = 0x400000
W2P = 0xC00000
QKV = 0x1000000
A2P = 0x2000000

out = []


def E(s=""):
    out.append(s)


def I(s):
    out.append("    " + s)


def L(s):
    out.append(s + ":")


def kernel_header(name):
    E(".p2align 8")
    E(f".globl {name}")
    E(f".type {name},@function")
    L(name)


descs = []


def kernel_desc(name, vgpr, sgpr=102):
    v = (vgpr + 3) // 4 * 4
    descs.append(f""".amdhsa_kernel {name}
  .amdhsa_next_free_vgpr {vgpr}
  .amdhsa_next_free_sgpr {sgpr}
  .amdhsa_accum_offset {v}
  .amdhsa_group_segment_fixed_size 0
  .amdhsa_kernarg_size 80
  .amdhsa_user_sgpr_count 2
  .amdhsa_user_sgpr_kernarg_segment_ptr 1
  .amdhsa_system_sgpr_workgroup_id_x 1
.end_amdhsa_kernel""")


def add64(sdst, ssrc, imm):
    I(f"s_add_u32 s{sdst}, s{ssrc}, {imm:#x}")
    I(f"s_addc_u32 s{sdst+1}, s{ssrc+1}, 0")


def add64s(sdst, ssrc, sreg):
    I(f"s_add_u32 s{sdst}, s{ssrc}, s{sreg}")
    I(f"s_addc_u32 s{sdst+1}, s{ssrc+1}, 0")


K1_LN = 128
K1_SEG = [
]
K1_GRID = 128 + 80 * 3 + 40 + 108


def repack_body(tag, src_sreg, N, C8, kind, tbase):
    rowb = N * 2
    if kind == "w1":
        I(f"v_cmp_gt_u32 vcc, {C8}, v0")
        I("s_and_saveexec_b64 s[30:31], vcc")
        I(f"s_cbranch_execz L_k1_end")
        I("v_mov_b32 v1, v0")
        I(f"s_mul_i32 s21, s20, {8*rowb}")
        add64s(22, src_sreg, 21)
        I("v_lshlrev_b32 v2, 4, v1")
    else:
        I("v_cmp_gt_u32 vcc, 160, v0")
        I("s_and_saveexec_b64 s[30:31], vcc")
        I(f"s_cbranch_execz L_k1_end")
        I("v_cmp_le_u32 vcc, 80, v0")
        I("s_nop 1")
        I("v_cndmask_b32 v3, 0, 1, vcc")
        I("v_mul_u32_u24 v4, 80, v3")
        I("v_sub_u32 v1, v0, v4")
        I(f"s_mul_i32 s21, s20, {16*rowb}")
        add64s(22, src_sreg, 21)
        I(f"v_mul_u32_u24 v4, {8*rowb}, v3")
        I("v_lshlrev_b32 v2, 4, v1")
        I("v_add_u32 v2, v2, v4")
    for j in range(8):
        I(f"global_load_dwordx4 v[{8+4*j}:{11+4*j}], v2, s[22:23]")
        if j < 7:
            I(f"s_add_u32 s22, s22, {rowb}")
            I("s_addc_u32 s23, s23, 0")
    if kind == "w1":
        mult = 2 if tag == "qkv" else 4
        I("v_lshrrev_b32 v4, 2, v1")
        I(f"v_mul_u32_u24 v4, {mult*KT1*1024}, v4")
        I("v_and_b32 v5, 3, v1")
        I("v_lshlrev_b32 v5, 6, v5")
        I("v_add_u32 v4, v4, v5")
        I(f"v_add_u32 v5, {KT1*1024}, v4")
        I("s_lshr_b32 s21, s20, 2")
        I("s_lshl_b32 s21, s21, 10")
        I("s_and_b32 s24, s20, 3")
        I("s_lshl_b32 s24, s24, 8")
        I("s_add_u32 s21, s21, s24")
        add64(24, 18, W1P + tbase * KT1 * 1024)
        add64s(24, 24, 21)
    else:
        I(f"s_lshl_b32 s21, s20, 1")
        I(f"s_add_u32 s21, s21, {tbase}")
        I("v_add_u32 v6, s21, v3")
        I("v_lshrrev_b32 v4, 1, v1")
        I(f"v_mul_u32_u24 v4, {KT2*1024}, v4")
        I("v_lshrrev_b32 v5, 2, v6")
        I("v_lshlrev_b32 v5, 10, v5")
        I("v_add_u32 v4, v4, v5")
        I("v_and_b32 v5, 3, v6")
        I("v_lshlrev_b32 v5, 8, v5")
        I("v_add_u32 v4, v4, v5")
        I("v_and_b32 v5, 1, v1")
        I("v_lshlrev_b32 v5, 7, v5")
        I("v_add_u32 v4, v4, v5")
        add64(24, 18, W2P)
    I("s_mov_b32 s26, 0x05040100")
    I("s_mov_b32 s27, 0x07060302")
    I("s_waitcnt vmcnt(0)")
    for ci in range(8):
        d, e = ci >> 1, ci & 1
        for dd in range(4):
            r0 = 8 + 4 * (2 * dd) + d
            r1 = 8 + 4 * (2 * dd + 1) + d
            I(f"v_perm_b32 v{40+dd}, v{r1}, v{r0}, s{26+e}")
        if kind == "w1":
            vaddr = "v4" if ci < 4 else "v5"
            I(f"global_store_dwordx4 {vaddr}, v[40:43], s[24:25] offset:{(ci&3)*16}")
        else:
            I(f"global_store_dwordx4 v4, v[40:43], s[24:25] offset:{ci*16}")
        I("s_nop 1")
    I("s_branch L_k1_end")


def gen_k1():
    name = "k1_prep_kernel"
    kernel_header(name)
    I(f"s_cmp_ge_u32 s2, {K1_GRID}")
    I("s_cbranch_scc1 L_k1_end")
    I("s_load_dwordx4 s[4:7], s[0:1], 0")
    I("s_load_dwordx2 s[8:9], s[0:1], 16")
    I("s_load_dwordx4 s[12:15], s[0:1], 32")
    I("s_load_dwordx2 s[16:17], s[0:1], 48")
    I("s_load_dwordx2 s[18:19], s[0:1], 72")
    I("s_waitcnt lgkmcnt(0)")
    I("s_cmp_lt_u32 s2, 128")
    I("s_cbranch_scc1 L_k1_ln")
    I("s_sub_u32 s20, s2, 128")
    I("s_cmp_lt_u32 s20, 80")
    I("s_cbranch_scc1 L_k1_qkv")
    I("s_sub_u32 s20, s20, 80")
    I("s_cmp_lt_u32 s20, 80")
    I("s_cbranch_scc1 L_k1_g")
    I("s_sub_u32 s20, s20, 80")
    I("s_cmp_lt_u32 s20, 80")
    I("s_cbranch_scc1 L_k1_u")
    I("s_sub_u32 s20, s20, 80")
    I("s_cmp_lt_u32 s20, 40")
    I("s_cbranch_scc1 L_k1_wo")
    I("s_sub_u32 s20, s20, 40")
    I("s_branch L_k1_wd")
    L("L_k1_qkv")
    repack_body("qkv", 6, F3, 240, "w1", 0)
    L("L_k1_g")
    repack_body("g", 12, FF, 216, "w1", 120)
    L("L_k1_u")
    repack_body("u", 14, FF, 216, "w1", 122)
    L("L_k1_wo")
    repack_body("wo", 8, D, 80, "w2", 0)
    L("L_k1_wd")
    repack_body("wd", 16, D, 80, "w2", 80)

    L("L_k1_ln")
    I("v_and_b32 v1, 63, v0")
    I("v_lshrrev_b32 v2, 6, v0")
    I("v_and_b32 v3, 15, v1")
    I("v_lshrrev_b32 v4, 4, v1")
    I("v_mul_u32_u24 v5, 1280, v3")
    I("v_mul_u32_u24 v6, 320, v2")
    I("v_add_u32 v5, v5, v6")
    I("v_lshlrev_b32 v6, 4, v4")
    I("v_add_u32 v5, v5, v6")
    I(f"s_mul_i32 s20, s2, {16*1280}")
    add64s(22, 4, 20)
    for t in range(5):
        I(f"global_load_dwordx4 v[{8+4*t}:{11+4*t}], v5, s[22:23] offset:{64*t}")
    I("s_waitcnt vmcnt(0)")
    for t in range(20):
        I(f"v_lshlrev_b32 v{28+2*t}, 16, v{8+t}")
        I(f"v_and_b32 v{29+2*t}, 0xffff0000, v{8+t}")
    I("v_add_f32 v68, v28, v29")
    for t in range(2, 40):
        I(f"v_add_f32 v68, v68, v{28+t}")
    I("v_lshlrev_b32 v6, 6, v3")
    I("v_lshlrev_b32 v7, 4, v2")
    I("v_add_u32 v6, v6, v7")
    I("v_lshlrev_b32 v7, 2, v4")
    I("v_add_u32 v6, v6, v7")
    I("v_lshlrev_b32 v7, 6, v3")
    I("ds_write_b32 v6, v68")
    I("s_waitcnt lgkmcnt(0)")
    I("s_barrier")
    for t in range(4):
        I(f"ds_read_b128 v[{72+4*t}:{75+4*t}], v7 offset:{16*t}")
    I("s_waitcnt lgkmcnt(0)")
    I("v_add_f32 v68, v72, v73")
    for t in range(2, 16):
        I(f"v_add_f32 v68, v68, v{72+t}")
    I("v_mul_f32 v69, 0x3acccccd, v68")
    for t in range(40):
        I(f"v_sub_f32 v{28+t}, v{28+t}, v69")
    I("v_mul_f32 v68, v28, v28")
    for t in range(1, 40):
        I(f"v_fmac_f32 v68, v{28+t}, v{28+t}")
    I("ds_write_b32 v6, v68 offset:1024")
    I("s_waitcnt lgkmcnt(0)")
    I("s_barrier")
    for t in range(4):
        I(f"ds_read_b128 v[{72+4*t}:{75+4*t}], v7 offset:{1024+16*t}")
    I("s_waitcnt lgkmcnt(0)")
    I("v_add_f32 v68, v72, v73")
    for t in range(2, 16):
        I(f"v_add_f32 v68, v68, v{72+t}")
    I("v_mov_b32 v70, 0x3727c5ac")
    I("v_fmac_f32 v70, 0x3acccccd, v68")
    I("v_rsq_f32 v70, v70")
    I("s_nop 1")
    for t in range(40):
        I(f"v_mul_f32 v{28+t}, v{28+t}, v70")
    for t in range(20):
        I(f"v_cvt_pk_bf16_f32 v{8+t}, v{28+2*t}, v{29+2*t}")
    I("v_mul_u32_u24 v5, 5120, v2")
    I("v_lshlrev_b32 v6, 4, v1")
    I("v_add_u32 v5, v5, v6")
    I(f"s_mul_i32 s20, s2, {KT1*1024}")
    add64(22, 18, XNP)
    add64s(22, 22, 20)
    for t in range(4):
        I(f"global_store_dwordx4 v5, v[{8+4*t}:{11+4*t}], s[22:23] offset:{1024*t}")
    I("v_add_u32 v5, 4096, v5")
    I("global_store_dwordx4 v5, v[24:27], s[22:23]")
    L("L_k1_end")
    I("s_endpgm")
    kernel_desc(name, 96, 32)


K2_GRID = 224
K2_NBUF = 5
K2_STAGE = 28 * 1024
K2_LDS = K2_NBUF * K2_STAGE
K2_BLOCK = 768


def gen_k2():
    name = "k2_gemm1_kernel"
    kernel_header(name)
    I(f"s_cmp_ge_u32 s2, {K2_GRID}")
    I("s_cbranch_scc1 L_k2_end")
    I("s_load_dwordx2 s[18:19], s[0:1], 72")
    I("s_and_b32 s4, s2, 1")
    I("s_lshl_b32 s4, s4, 2")
    I("s_bfe_u32 s5, s2, 0x20003")
    I("s_add_u32 s4, s4, s5")
    I("s_bfe_u32 s5, s2, 0x20001")
    I("s_mul_i32 s5, s5, 7")
    I("s_lshr_b32 s7, s2, 5")
    I("s_add_u32 s5, s5, s7")
    I("v_lshrrev_b32 v1, 6, v0")
    I("v_and_b32 v2, 63, v0")
    I("s_nop 0")
    I("v_readfirstlane_b32 s6, v1")
    I("v_lshlrev_b32 v3, 4, v2")
    I("s_mul_i32 s8, s6, 43")
    I("s_lshr_b32 s8, s8, 7")
    I("s_mul_i32 s7, s8, 3")
    I("s_sub_u32 s7, s6, s7")
    I(f"s_mul_i32 s10, s5, {12*KT1*1024}")
    I(f"s_add_u32 s10, s10, {W1P:#x}")
    I(f"s_mul_i32 s11, s4, {16*KT1*1024}")
    I(f"s_add_u32 s11, s11, {XNP:#x}")
    for i in range(3):
        I(f"s_add_u32 s12, s6, {12*i}")
        I(f"s_lshl_b32 s{24+i}, s12, 10")
        I("s_cmp_lt_u32 s12, 12")
        I("s_cselect_b32 s13, 0, 12")
        I("s_sub_u32 s13, s12, s13")
        I(f"s_mul_i32 s14, s13, {KT1*1024}")
        I("s_cmp_lt_u32 s12, 12")
        I("s_cselect_b32 s13, s10, s11")
        I("s_add_u32 s14, s14, s13")
        I(f"v_add_u32 v{4+i}, s14, v3")
    I("s_waitcnt lgkmcnt(0)")
    I("s_mov_b32 s12, s18")
    I("s_mov_b32 s13, s19")
    I("s_lshl_b32 s15, s7, 12")
    I("v_add_u32 v9, s15, v3")
    I("s_lshl_b32 s15, s8, 12")
    I("s_add_u32 s15, s15, 12288")
    I("v_add_u32 v10, s15, v3")
    I(f"v_add_u32 v11, {2*K2_STAGE}, v9")
    I(f"v_add_u32 v12, {2*K2_STAGE}, v10")
    I(f"v_add_u32 v13, {4*K2_STAGE}, v9")
    I(f"v_add_u32 v14, {4*K2_STAGE}, v10")
    ACC = 16
    FR = 80
    NST = 20
    lbl = [0]

    def issue_dma(st):
        buf = st % K2_NBUF
        for i in range(2):
            I(f"s_add_u32 m0, s{24+i}, {buf*K2_STAGE}")
            I("s_nop 0")
            I(f"global_load_lds_dwordx4 v{4+i}, s[12:13]")
        lbl[0] += 1
        I("s_cmp_ge_u32 s6, 4")
        I(f"s_cbranch_scc1 L_k2_d{lbl[0]}")
        I(f"s_add_u32 m0, s26, {buf*K2_STAGE}")
        I("s_nop 0")
        I("global_load_lds_dwordx4 v6, s[12:13]")
        L(f"L_k2_d{lbl[0]}")
        I("s_add_u32 s12, s12, 1024")
        I("s_addc_u32 s13, s13, 0")

    def wait_stage(n):
        if n == 0:
            I("s_waitcnt vmcnt(0)")
            return
        lbl[0] += 1
        I("s_cmp_ge_u32 s6, 4")
        I(f"s_cbranch_scc1 L_k2_w{lbl[0]}")
        I(f"s_waitcnt vmcnt({3*n})")
        L(f"L_k2_w{lbl[0]}")
        I(f"s_waitcnt vmcnt({3*n})" if False else "s_nop 0")

    def frag_reads(st):
        buf = st % K2_NBUF
        fs = FR + (st & 1) * 32
        va, vb = [("v9", "v10"), ("v11", "v12"), ("v13", "v14")][buf >> 1]
        for i in range(4):
            off = i * 1024 + (buf & 1) * K2_STAGE
            I(f"ds_read_b128 v[{fs+4*i}:{fs+4*i+3}], {va} offset:{off}")
            I(f"ds_read_b128 v[{fs+16+4*i}:{fs+16+4*i+3}], {vb} offset:{off}")

    def mfmas(st):
        fs = FR + (st & 1) * 32
        for i in range(4):
            for j in range(4):
                a = ACC + (i * 4 + j) * 4
                c = "0" if st == 0 else f"v[{a}:{a+3}]"
                I(f"v_mfma_f32_16x16x32_bf16 v[{a}:{a+3}], v[{fs+4*i}:{fs+4*i+3}], v[{fs+16+4*j}:{fs+16+4*j+3}], {c}")

    for st in range(K2_NBUF - 1):
        issue_dma(st)
    for st in range(NST):
        n = min(K2_NBUF - 2, NST - 1 - st)
        if n == 0:
            I("s_waitcnt vmcnt(0)")
        else:
            lbl[0] += 1
            I("s_cmp_ge_u32 s6, 4")
            I(f"s_cbranch_scc1 L_k2_w{lbl[0]}")
            I(f"s_waitcnt vmcnt({3*n})")
            I(f"s_branch L_k2_x{lbl[0]}")
            L(f"L_k2_w{lbl[0]}")
            I(f"s_waitcnt vmcnt({2*n})")
            L(f"L_k2_x{lbl[0]}")
        I("s_barrier")
        if st + K2_NBUF - 1 < NST:
            issue_dma(st + K2_NBUF - 1)
        frag_reads(st)
        I("s_waitcnt lgkmcnt(0)")
        mfmas(st)
    I("s_nop 7")
    I("s_nop 7")
    I("s_lshl_b32 s20, s4, 4")
    I("s_lshl_b32 s21, s8, 2")
    I("s_add_u32 s20, s20, s21")
    I("s_cmp_lt_u32 s5, 10")
    I("s_cbranch_scc1 L_k2_qkv")
    I("s_sub_u32 s21, s5, 10")
    I("s_mul_i32 s21, s21, 3")
    I("s_add_u32 s21, s21, s7")
    I("s_add_u32 s21, s21, 20")
    I(f"s_mul_i32 s22, s20, {KT2}")
    I("s_add_u32 s22, s22, s21")
    I("s_lshl_b32 s22, s22, 10")
    add64(24, 18, A2P)
    add64s(24, 24, 22)
    for j in range(4):
        for r in range(8):
            g = ACC + ((r >> 2) * 4 + j) * 4 + (r & 3)
            u = ACC + ((2 + (r >> 2)) * 4 + j) * 4 + (r & 3)
            I(f"v_max_f32 v{FR+r}, 0, v{g}")
            I(f"v_mul_f32 v{FR+r}, v{FR+r}, v{u}")
        for d in range(4):
            I(f"v_cvt_pk_bf16_f32 v{FR+8+d}, v{FR+2*d}, v{FR+2*d+1}")
        I(f"global_store_dwordx4 v3, v[{FR+8}:{FR+11}], s[24:25]")
        I(f"s_add_u32 s24, s24, {KT2*1024}")
        I("s_addc_u32 s25, s25, 0")
    I("s_branch L_k2_end")
    L("L_k2_qkv")
    I("v_and_b32 v10, 15, v2")
    I(f"v_mul_u32_u24 v10, {F3*2}, v10")
    I("v_lshrrev_b32 v11, 4, v2")
    I("v_lshlrev_b32 v11, 4, v11")
    I("v_add_u32 v10, v10, v11")
    I(f"s_mul_i32 s22, s20, {16*F3*2}")
    I("s_mul_i32 s21, s5, 384")
    I("s_add_u32 s22, s22, s21")
    I("s_lshl_b32 s21, s7, 7")
    I("s_add_u32 s22, s22, s21")
    add64(24, 18, QKV)
    add64s(24, 24, 22)
    for j in range(4):
        for p in range(2):
            for d in range(4):
                t = 2 * p + (d >> 1)
                a = ACC + (t * 4 + j) * 4 + (d & 1) * 2
                I(f"v_cvt_pk_bf16_f32 v{FR+8*p+d}, v{a}, v{a+1}")
            I(f"global_store_dwordx4 v10, v[{FR+8*p}:{FR+8*p+3}], s[24:25] offset:{64*p}")
        I(f"s_add_u32 s24, s24, {16*F3*2}")
        I("s_addc_u32 s25, s25, 0")
    L("L_k2_end")
    I("s_endpgm")
    kernel_desc(name, FR + 64, 32)


K3_GRID = 256


def gen_k3():
    name = "k3_attn_kernel"
    kernel_header(name)
    I(f"s_cmp_ge_u32 s2, {K3_GRID}")
    I("s_cbranch_scc1 L_k3_end")
    I("s_load_dwordx2 s[18:19], s[0:1], 72")
    I("s_and_b32 s3, s2, 7")
    I("s_lshl_b32 s3, s3, 5")
    I("s_lshr_b32 s4, s2, 3")
    I("s_add_u32 s3, s3, s4")
    I("s_lshl_b32 s3, s3, 8")
    I("v_add_u32 v1, s3, v0")
    I("v_lshrrev_b32 v2, 5, v1")
    I("v_and_b32 v3, 31, v1")
    I("v_mul_u32_u24 v4, 40, v3")
    I(f"v_mul_u32_u24 v5, {F3*2}, v2")
    I("v_add_u32 v5, v5, v4")
    I("s_waitcnt lgkmcnt(0)")
    add64(20, 18, QKV)
    Q = 8
    for t in range(5):
        I(f"global_load_dwordx2 v[{Q+2*t}:{Q+2*t+1}], v5, s[20:21] offset:{8*t}")
    KV = 20
    VV = 100
    for w in range(8):
        I(f"v_subrev_u32 v6, {2*w}, v2")
        I("v_max_i32 v6, 0, v6")
        I(f"v_mul_u32_u24 v6, {F3*2}, v6")
        I("v_add_u32 v6, v6, v4")
        for t in range(5):
            I(f"global_load_dwordx2 v[{KV+10*w+2*t}:{KV+10*w+2*t+1}], v6, s[20:21] offset:{1280+8*t}")
        for t in range(5):
            I(f"global_load_dwordx2 v[{VV+10*w+2*t}:{VV+10*w+2*t+1}], v6, s[20:21] offset:{2560+8*t}")
    LG = 180
    I("s_waitcnt vmcnt(0)")
    for w in range(8):
        I(f"v_dot2_f32_bf16 v{LG+w}, v{Q}, v{KV+10*w}, 0")
        for t in range(1, 10):
            I(f"v_dot2_f32_bf16 v{LG+w}, v{Q+t}, v{KV+10*w+t}, v{LG+w}")
    I("s_mov_b32 s4, 0x3ea52ef5")
    I("v_mov_b32 v7, 0xff7fffff")
    for w in range(8):
        I(f"v_mul_f32 v{LG+w}, s4, v{LG+w}")
        if w > 0:
            I(f"v_cmp_le_u32 vcc, {2*w}, v2")
            I("s_nop 1")
            I(f"v_cndmask_b32 v{LG+w}, v7, v{LG+w}, vcc")
    I(f"v_max3_f32 v6, v{LG}, v{LG+1}, v{LG+2}")
    I(f"v_max3_f32 v6, v6, v{LG+3}, v{LG+4}")
    I(f"v_max3_f32 v6, v6, v{LG+5}, v{LG+6}")
    I(f"v_max_f32 v6, v6, v{LG+7}")
    for w in range(8):
        I(f"v_sub_f32 v{LG+w}, v{LG+w}, v6")
    for w in range(8):
        I(f"v_exp_f32 v{LG+w}, v{LG+w}")
    I("s_nop 0")
    I(f"v_add_f32 v6, v{LG}, v{LG+1}")
    for w in range(2, 8):
        I(f"v_add_f32 v6, v6, v{LG+w}")
    I("v_rcp_f32 v6, v6")
    I("s_nop 0")
    for w in range(8):
        I(f"v_mul_f32 v{LG+w}, v{LG+w}, v6")
    O = 20
    for w in range(8):
        for t in range(10):
            I(f"v_lshlrev_b32 v6, 16, v{VV+10*w+t}")
            I(f"v_and_b32 v7, 0xffff0000, v{VV+10*w+t}")
            if w == 0:
                I(f"v_mul_f32 v{O+2*t}, v{LG}, v6")
                I(f"v_mul_f32 v{O+2*t+1}, v{LG}, v7")
            else:
                I(f"v_fmac_f32 v{O+2*t}, v{LG+w}, v6")
                I(f"v_fmac_f32 v{O+2*t+1}, v{LG+w}, v7")
    for t in range(10):
        I(f"v_cvt_pk_bf16_f32 v{40+t}, v{O+2*t}, v{O+2*t+1}")
    add64(20, 18, A2P)
    I("v_lshrrev_b32 v6, 4, v2")
    I(f"v_mul_u32_u24 v6, {KT2*1024}, v6")
    I("v_and_b32 v7, 15, v2")
    I("v_lshlrev_b32 v7, 4, v7")
    I("v_add_u32 v6, v6, v7")
    I("v_mul_u32_u24 v4, 20, v3")
    for g in range(5):
        I(f"v_add_u32 v7, {4*g}, v4")
        I("v_lshrrev_b32 v50, 5, v7")
        I("v_lshlrev_b32 v50, 10, v50")
        I("v_bfe_u32 v51, v7, 3, 2")
        I("v_lshlrev_b32 v51, 8, v51")
        I("v_add3_u32 v50, v50, v51, v6")
        I("v_and_b32 v51, 4, v7")
        I("v_lshlrev_b32 v51, 1, v51")
        I("v_add_u32 v50, v50, v51")
        I(f"global_store_dwordx2 v50, v[{40+2*g}:{41+2*g}], s[20:21]")
        I("s_nop 1")
    L("L_k3_end")
    I("s_endpgm")
    kernel_desc(name, 192, 32)


K4_GRID = 256
K4_LDS = 4 * 20480
K4_DEPTH = 3


def gen_k4():
    name = "k4_gemm2_kernel"
    kernel_header(name)
    I(f"s_cmp_ge_u32 s2, {K4_GRID}")
    I("s_cbranch_scc1 L_k4_end")
    I("s_load_dwordx2 s[18:19], s[0:1], 72")
    I("s_load_dwordx2 s[20:21], s[0:1], 0")
    I("s_load_dwordx2 s[22:23], s[0:1], 56")
    I("s_bfe_u32 s4, s2, 0x20001")
    I("s_lshl_b32 s4, s4, 3")
    I("s_lshr_b32 s5, s2, 5")
    I("s_add_u32 s4, s4, s5")
    I("s_and_b32 s5, s2, 1")
    I("s_lshl_b32 s5, s5, 2")
    I("s_bfe_u32 s7, s2, 0x20003")
    I("s_add_u32 s5, s5, s7")
    I("v_lshrrev_b32 v1, 6, v0")
    I("v_and_b32 v2, 63, v0")
    I("s_nop 0")
    I("v_readfirstlane_b32 s6, v1")
    I("v_lshlrev_b32 v3, 4, v2")
    for i in range(5):
        I(f"v_add_u32 v{4+i}, {i*KT2*1024}, v3")
    for j in range(4):
        I(f"v_add_u32 v{9+j}, {j*KT2*1024}, v3")
    I("s_waitcnt lgkmcnt(0)")
    I(f"s_mul_i32 s7, s5, {5*KT2}")
    I("s_add_u32 s7, s7, s6")
    I("s_lshl_b32 s7, s7, 10")
    add64(8, 18, W2P)
    add64s(8, 8, 7)
    I(f"s_mul_i32 s7, s4, {4*KT2}")
    I("s_add_u32 s7, s7, s6")
    I("s_lshl_b32 s7, s7, 10")
    add64(10, 18, A2P)
    add64s(10, 10, 7)
    ACC = 16
    FR = 96
    NSTEP = 19

    def loads(t):
        fs = FR + (t % K4_DEPTH) * 36
        for i in range(5):
            I(f"global_load_dwordx4 v[{fs+4*i}:{fs+4*i+3}], v{4+i}, s[8:9]")
        for j in range(4):
            I(f"global_load_dwordx4 v[{fs+20+4*j}:{fs+20+4*j+3}], v{9+j}, s[10:11]")
        I("s_add_u32 s8, s8, 4096")
        I("s_addc_u32 s9, s9, 0")
        I("s_add_u32 s10, s10, 4096")
        I("s_addc_u32 s11, s11, 0")

    def mf(t):
        fs = FR + (t % K4_DEPTH) * 36
        for i in range(5):
            for j in range(4):
                a = ACC + (i * 4 + j) * 4
                c = "0" if t == 0 else f"v[{a}:{a+3}]"
                I(f"v_mfma_f32_16x16x32_bf16 v[{a}:{a+3}], v[{fs+4*i}:{fs+4*i+3}], v[{fs+20+4*j}:{fs+20+4*j+3}], {c}")

    for t in range(K4_DEPTH):
        loads(t)
    for t in range(18):
        rem = min(K4_DEPTH - 1, 17 - t)
        I(f"s_waitcnt vmcnt({9*rem})")
        mf(t)
        if t + K4_DEPTH < 18:
            loads(t + K4_DEPTH)
    I("s_cmp_ge_u32 s6, 2")
    I("s_cbranch_scc1 L_k4_red")
    loads(18)
    I("s_waitcnt vmcnt(0)")
    mf(18)
    L("L_k4_red")
    I("s_nop 7")
    I("s_nop 7")
    I(f"s_mul_i32 s7, s6, 20480")
    I("v_add_u32 v13, s7, v3")
    for t in range(20):
        I(f"ds_write_b128 v13, v[{ACC+4*t}:{ACC+4*t+3}] offset:{1024*t}")
    I("s_waitcnt lgkmcnt(0)")
    I("s_barrier")
    I(f"s_mul_i32 s7, s6, 5120")
    I("v_add_u32 v13, s7, v3")
    I("v_add_u32 v15, 61440, v13")
    for tt in range(5):
        for w in range(4):
            if w < 3:
                I(f"ds_read_b128 v[{ACC+16*tt+4*w}:{ACC+16*tt+4*w+3}], v13 offset:{w*20480+tt*1024}")
            else:
                I(f"ds_read_b128 v[{ACC+16*tt+4*w}:{ACC+16*tt+4*w+3}], v15 offset:{tt*1024}")
    I("v_and_b32 v14, 15, v2")
    I("v_mul_u32_u24 v14, 1280, v14")
    I("v_lshrrev_b32 v15, 4, v2")
    I("v_lshlrev_b32 v15, 3, v15")
    I("v_add_u32 v14, v14, v15")
    I("s_mul_i32 s12, s4, 81920")
    I("s_mul_i32 s13, s5, 160")
    I("s_add_u32 s12, s12, s13")
    RES = 100
    for tt in range(5):
        I(f"s_mul_i32 s13, s6, 5")
        I(f"s_add_u32 s13, s13, {tt}")
        I("s_lshr_b32 s14, s13, 2")
        I("s_and_b32 s15, s13, 3")
        I("s_lshl_b32 s14, s14, 5")
        I("s_mul_i32 s15, s15, 20480")
        I("s_add_u32 s14, s14, s15")
        I("s_add_u32 s14, s14, s12")
        I(f"v_add_u32 v{RES+10+tt}, s14, v14")
        I(f"global_load_dwordx2 v[{RES+2*tt}:{RES+2*tt+1}], v{RES+10+tt}, s[20:21]")
    I("s_waitcnt lgkmcnt(0)")
    for tt in range(5):
        b = ACC + 16 * tt
        for r in range(4):
            I(f"v_add_f32 v{b+r}, v{b+r}, v{b+4+r}")
            I(f"v_add_f32 v{b+8+r}, v{b+8+r}, v{b+12+r}")
        for r in range(4):
            I(f"v_add_f32 v{b+r}, v{b+r}, v{b+8+r}")
    I("s_waitcnt vmcnt(0)")
    for tt in range(5):
        b = ACC + 16 * tt
        for d in range(2):
            I(f"v_lshlrev_b32 v13, 16, v{RES+2*tt+d}")
            I(f"v_and_b32 v15, 0xffff0000, v{RES+2*tt+d}")
            I(f"v_add_f32 v{b+2*d}, v{b+2*d}, v13")
            I(f"v_add_f32 v{b+2*d+1}, v{b+2*d+1}, v15")
        I(f"v_cvt_pk_bf16_f32 v{b+4}, v{b}, v{b+1}")
        I(f"v_cvt_pk_bf16_f32 v{b+5}, v{b+2}, v{b+3}")
        I(f"global_store_dwordx2 v{RES+10+tt}, v[{b+4}:{b+5}], s[22:23]")
    L("L_k4_end")
    I("s_endpgm")
    kernel_desc(name, FR + K4_DEPTH * 36, 32)


header = open("parallel_sum__sliding_local_dilated__glu_gated_reglu__prompt.s.ref").read().split("\n")
hdr = []
for l in header:
    if l.startswith("; Override") or l.startswith("; grid=") or l.startswith("; @launch"):
        continue
    if not l.startswith(";"):
        break
    hdr.append(l)
for l in hdr:
    E(l)
E(f"; @launch kernel=k1_prep_kernel grid=({K1_GRID},1,1) block=(256,1,1) lds=2048")
E(f"; @launch kernel=k2_gemm1_kernel grid=({K2_GRID},1,1) block=({K2_BLOCK},1,1) lds={K2_LDS}")
E(f"; @launch kernel=k3_attn_kernel grid=({K3_GRID},1,1) block=(256,1,1) lds=0")
E(f"; @launch kernel=k4_gemm2_kernel grid=({K4_GRID},1,1) block=(256,1,1) lds={K4_LDS}")
E('.amdgcn_target "amdgcn-amd-amdhsa--gfx950"')
E(".text")
gen_k1()
gen_k2()
gen_k3()
gen_k4()
E('.section .rodata,"a"')
E(".p2align 6")
for d in descs:
    E(".p2align 6")
    E(d)
dst = sys.argv[1] if len(sys.argv) > 1 else "parallel_sum__sliding_local_dilated__glu_gated_reglu__prompt.s"
open(dst, "w").write("\n".join(out) + "\n")
```

```python
import sys

S, D, F3, FF = 2048, 640, 1920, 1728
KT1 = 20
KT2 = 74
XNP = 0x0
W1P = 0x400000
W2P = 0xC00000
QKV = 0x1000000
A2P = 0x2000000

out = []


def E(s=""):
    out.append(s)


def I(s):
    out.append("    " + s)


def L(s):
    out.append(s + ":")


def kernel_header(name):
    E(".p2align 8")
    E(f".globl {name}")
    E(f".type {name},@function")
    L(name)


descs = []


def kernel_desc(name, vgpr, sgpr=102):
    v = (vgpr + 3) // 4 * 4
    descs.append(f""".amdhsa_kernel {name}
  .amdhsa_next_free_vgpr {vgpr}
  .amdhsa_next_free_sgpr {sgpr}
  .amdhsa_accum_offset {v}
  .amdhsa_group_segment_fixed_size 0
  .amdhsa_kernarg_size 80
  .amdhsa_user_sgpr_count 2
  .amdhsa_user_sgpr_kernarg_segment_ptr 1
  .amdhsa_system_sgpr_workgroup_id_x 1
.end_amdhsa_kernel""")


def add64(sdst, ssrc, imm):
    I(f"s_add_u32 s{sdst}, s{ssrc}, {imm:#x}")
    I(f"s_addc_u32 s{sdst+1}, s{ssrc+1}, 0")


def add64s(sdst, ssrc, sreg):
    I(f"s_add_u32 s{sdst}, s{ssrc}, s{sreg}")
    I(f"s_addc_u32 s{sdst+1}, s{ssrc+1}, 0")


K1_LN = 128
K1_SEG = [
]
K1_GRID = 128 + 80 * 3 + 40 + 108


def repack_body(tag, src_sreg, N, C8, kind, tbase):
    rowb = N * 2
    if kind == "w1":
        I(f"v_cmp_gt_u32 vcc, {C8}, v0")
        I("s_and_saveexec_b64 s[30:31], vcc")
        I(f"s_cbranch_execz L_k1_end")
        I("v_mov_b32 v1, v0")
        I(f"s_mul_i32 s21, s20, {8*rowb}")
        add64s(22, src_sreg, 21)
        I("v_lshlrev_b32 v2, 4, v1")
    else:
        I("v_cmp_gt_u32 vcc, 160, v0")
        I("s_and_saveexec_b64 s[30:31], vcc")
        I(f"s_cbranch_execz L_k1_end")
        I("v_cmp_le_u32 vcc, 80, v0")
        I("s_nop 1")
        I("v_cndmask_b32 v3, 0, 1, vcc")
        I("v_mul_u32_u24 v4, 80, v3")
        I("v_sub_u32 v1, v0, v4")
        I(f"s_mul_i32 s21, s20, {16*rowb}")
        add64s(22, src_sreg, 21)
        I(f"v_mul_u32_u24 v4, {8*rowb}, v3")
        I("v_lshlrev_b32 v2, 4, v1")
        I("v_add_u32 v2, v2, v4")
    for j in range(8):
        I(f"global_load_dwordx4 v[{8+4*j}:{11+4*j}], v2, s[22:23]")
        if j < 7:
            I(f"s_add_u32 s22, s22, {rowb}")
            I("s_addc_u32 s23, s23, 0")
    if kind == "w1":
        mult = 2 if tag == "qkv" else 4
        I("v_lshrrev_b32 v4, 2, v1")
        I(f"v_mul_u32_u24 v4, {mult*KT1*1024}, v4")
        I("v_and_b32 v5, 3, v1")
        I("v_lshlrev_b32 v5, 6, v5")
        I("v_add_u32 v4, v4, v5")
        I(f"v_add_u32 v5, {KT1*1024}, v4")
        I("s_lshr_b32 s21, s20, 2")
        I("s_lshl_b32 s21, s21, 10")
        I("s_and_b32 s24, s20, 3")
        I("s_lshl_b32 s24, s24, 8")
        I("s_add_u32 s21, s21, s24")
        add64(24, 18, W1P + tbase * KT1 * 1024)
        add64s(24, 24, 21)
    else:
        I(f"s_lshl_b32 s21, s20, 1")
        I(f"s_add_u32 s21, s21, {tbase}")
        I("v_add_u32 v6, s21, v3")
        I("v_lshrrev_b32 v4, 1, v1")
        I(f"v_mul_u32_u24 v4, {KT2*1024}, v4")
        I("v_lshrrev_b32 v5, 2, v6")
        I("v_lshlrev_b32 v5, 10, v5")
        I("v_add_u32 v4, v4, v5")
        I("v_and_b32 v5, 3, v6")
        I("v_lshlrev_b32 v5, 8, v5")
        I("v_add_u32 v4, v4, v5")
        I("v_and_b32 v5, 1, v1")
        I("v_lshlrev_b32 v5, 7, v5")
        I("v_add_u32 v4, v4, v5")
        add64(24, 18, W2P)
    I("s_mov_b32 s26, 0x05040100")
    I("s_mov_b32 s27, 0x07060302")
    I("s_waitcnt vmcnt(0)")
    for ci in range(8):
        d, e = ci >> 1, ci & 1
        for dd in range(4):
            r0 = 8 + 4 * (2 * dd) + d
            r1 = 8 + 4 * (2 * dd + 1) + d
            I(f"v_perm_b32 v{40+dd}, v{r1}, v{r0}, s{26+e}")
        if kind == "w1":
            vaddr = "v4" if ci < 4 else "v5"
            I(f"global_store_dwordx4 {vaddr}, v[40:43], s[24:25] offset:{(ci&3)*16}")
        else:
            I(f"global_store_dwordx4 v4, v[40:43], s[24:25] offset:{ci*16}")
        I("s_nop 1")
    I("s_branch L_k1_end")


def gen_k1():
    name = "k1_prep_kernel"
    kernel_header(name)
    I(f"s_cmp_ge_u32 s2, {K1_GRID}")
    I("s_cbranch_scc1 L_k1_end")
    I("s_load_dwordx4 s[4:7], s[0:1], 0")
    I("s_load_dwordx2 s[8:9], s[0:1], 16")
    I("s_load_dwordx4 s[12:15], s[0:1], 32")
    I("s_load_dwordx2 s[16:17], s[0:1], 48")
    I("s_load_dwordx2 s[18:19], s[0:1], 72")
    I("s_waitcnt lgkmcnt(0)")
    I("s_cmp_lt_u32 s2, 128")
    I("s_cbranch_scc1 L_k1_ln")
    I("s_sub_u32 s20, s2, 128")
    I("s_cmp_lt_u32 s20, 80")
    I("s_cbranch_scc1 L_k1_qkv")
    I("s_sub_u32 s20, s20, 80")
    I("s_cmp_lt_u32 s20, 80")
    I("s_cbranch_scc1 L_k1_g")
    I("s_sub_u32 s20, s20, 80")
    I("s_cmp_lt_u32 s20, 80")
    I("s_cbranch_scc1 L_k1_u")
    I("s_sub_u32 s20, s20, 80")
    I("s_cmp_lt_u32 s20, 40")
    I("s_cbranch_scc1 L_k1_wo")
    I("s_sub_u32 s20, s20, 40")
    I("s_branch L_k1_wd")
    L("L_k1_qkv")
    repack_body("qkv", 6, F3, 240, "w1", 0)
    L("L_k1_g")
    repack_body("g", 12, FF, 216, "w1", 120)
    L("L_k1_u")
    repack_body("u", 14, FF, 216, "w1", 122)
    L("L_k1_wo")
    repack_body("wo", 8, D, 80, "w2", 0)
    L("L_k1_wd")
    repack_body("wd", 16, D, 80, "w2", 80)

    L("L_k1_ln")
    I("v_and_b32 v1, 63, v0")
    I("v_lshrrev_b32 v2, 6, v0")
    I("v_and_b32 v3, 15, v1")
    I("v_lshrrev_b32 v4, 4, v1")
    I("v_mul_u32_u24 v5, 1280, v3")
    I("v_mul_u32_u24 v6, 320, v2")
    I("v_add_u32 v5, v5, v6")
    I("v_lshlrev_b32 v6, 4, v4")
    I("v_add_u32 v5, v5, v6")
    I(f"s_mul_i32 s20, s2, {16*1280}")
    add64s(22, 4, 20)
    for t in range(5):
        I(f"global_load_dwordx4 v[{8+4*t}:{11+4*t}], v5, s[22:23] offset:{64*t}")
    I("s_waitcnt vmcnt(0)")
    for t in range(20):
        I(f"v_lshlrev_b32 v{28+2*t}, 16, v{8+t}")
        I(f"v_and_b32 v{29+2*t}, 0xffff0000, v{8+t}")
    I("v_add_f32 v68, v28, v29")
    for t in range(2, 40):
        I(f"v_add_f32 v68, v68, v{28+t}")
    I("v_lshlrev_b32 v6, 6, v3")
    I("v_lshlrev_b32 v7, 4, v2")
    I("v_add_u32 v6, v6, v7")
    I("v_lshlrev_b32 v7, 2, v4")
    I("v_add_u32 v6, v6, v7")
    I("v_lshlrev_b32 v7, 6, v3")
    I("ds_write_b32 v6, v68")
    I("s_waitcnt lgkmcnt(0)")
    I("s_barrier")
    for t in range(4):
        I(f"ds_read_b128 v[{72+4*t}:{75+4*t}], v7 offset:{16*t}")
    I("s_waitcnt lgkmcnt(0)")
    I("v_add_f32 v68, v72, v73")
    for t in range(2, 16):
        I(f"v_add_f32 v68, v68, v{72+t}")
    I("v_mul_f32 v69, 0x3acccccd, v68")
    for t in range(40):
        I(f"v_sub_f32 v{28+t}, v{28+t}, v69")
    I("v_mul_f32 v68, v28, v28")
    for t in range(1, 40):
        I(f"v_fmac_f32 v68, v{28+t}, v{28+t}")
    I("ds_write_b32 v6, v68 offset:1024")
    I("s_waitcnt lgkmcnt(0)")
    I("s_barrier")
    for t in range(4):
        I(f"ds_read_b128 v[{72+4*t}:{75+4*t}], v7 offset:{1024+16*t}")
    I("s_waitcnt lgkmcnt(0)")
    I("v_add_f32 v68, v72, v73")
    for t in range(2, 16):
        I(f"v_add_f32 v68, v68, v{72+t}")
    I("v_mov_b32 v70, 0x3727c5ac")
    I("v_fmac_f32 v70, 0x3acccccd, v68")
    I("v_rsq_f32 v70, v70")
    I("s_nop 1")
    for t in range(40):
        I(f"v_mul_f32 v{28+t}, v{28+t}, v70")
    for t in range(20):
        I(f"v_cvt_pk_bf16_f32 v{8+t}, v{28+2*t}, v{29+2*t}")
    I("v_mul_u32_u24 v5, 5120, v2")
    I("v_lshlrev_b32 v6, 4, v1")
    I("v_add_u32 v5, v5, v6")
    I(f"s_mul_i32 s20, s2, {KT1*1024}")
    add64(22, 18, XNP)
    add64s(22, 22, 20)
    for t in range(4):
        I(f"global_store_dwordx4 v5, v[{8+4*t}:{11+4*t}], s[22:23] offset:{1024*t}")
    I("v_add_u32 v5, 4096, v5")
    I("global_store_dwordx4 v5, v[24:27], s[22:23]")
    L("L_k1_end")
    I("s_endpgm")
    kernel_desc(name, 96, 32)


K2_GRID = 224
K2_NBUF = 5
K2_STAGE = 28 * 1024
K2_LDS = K2_NBUF * K2_STAGE
K2_BLOCK = 768


def gen_k2():
    name = "k2_gemm1_kernel"
    kernel_header(name)
    I(f"s_cmp_ge_u32 s2, {K2_GRID}")
    I("s_cbranch_scc1 L_k2_end")
    I("s_load_dwordx2 s[18:19], s[0:1], 72")
    I("s_and_b32 s4, s2, 1")
    I("s_lshl_b32 s4, s4, 2")
    I("s_bfe_u32 s5, s2, 0x20003")
    I("s_add_u32 s4, s4, s5")
    I("s_bfe_u32 s5, s2, 0x20001")
    I("s_mul_i32 s5, s5, 7")
    I("s_lshr_b32 s7, s2, 5")
    I("s_add_u32 s5, s5, s7")
    I("v_lshrrev_b32 v1, 6, v0")
    I("v_and_b32 v2, 63, v0")
    I("s_nop 0")
    I("v_readfirstlane_b32 s6, v1")
    I("v_lshlrev_b32 v3, 4, v2")
    I("s_mul_i32 s8, s6, 43")
    I("s_lshr_b32 s8, s8, 7")
    I("s_mul_i32 s7, s8, 3")
    I("s_sub_u32 s7, s6, s7")
    I(f"s_mul_i32 s10, s5, {12*KT1*1024}")
    I(f"s_add_u32 s10, s10, {W1P:#x}")
    I(f"s_mul_i32 s11, s4, {16*KT1*1024}")
    I(f"s_add_u32 s11, s11, {XNP:#x}")
    for i in range(3):
        I(f"s_add_u32 s12, s6, {12*i}")
        I(f"s_lshl_b32 s{24+i}, s12, 10")
        I("s_cmp_lt_u32 s12, 12")
        I("s_cselect_b32 s13, 0, 12")
        I("s_sub_u32 s13, s12, s13")
        I(f"s_mul_i32 s14, s13, {KT1*1024}")
        I("s_cmp_lt_u32 s12, 12")
        I("s_cselect_b32 s13, s10, s11")
        I("s_add_u32 s14, s14, s13")
        I(f"v_add_u32 v{4+i}, s14, v3")
    I("s_waitcnt lgkmcnt(0)")
    I("s_mov_b32 s12, s18")
    I("s_mov_b32 s13, s19")
    I("s_lshl_b32 s15, s7, 12")
    I("v_add_u32 v9, s15, v3")
    I("s_lshl_b32 s15, s8, 12")
    I("s_add_u32 s15, s15, 12288")
    I("v_add_u32 v10, s15, v3")
    I(f"v_add_u32 v11, {2*K2_STAGE}, v9")
    I(f"v_add_u32 v12, {2*K2_STAGE}, v10")
    I(f"v_add_u32 v13, {4*K2_STAGE}, v9")
    I(f"v_add_u32 v14, {4*K2_STAGE}, v10")
    ACC = 16
    FR = 80
    NST = 20
    lbl = [0]

    def issue_dma(st):
        buf = st % K2_NBUF
        for i in range(2):
            I(f"s_add_u32 m0, s{24+i}, {buf*K2_STAGE}")
            I("s_nop 0")
            I(f"global_load_lds_dwordx4 v{4+i}, s[12:13]")
        lbl[0] += 1
        I("s_cmp_ge_u32 s6, 4")
        I(f"s_cbranch_scc1 L_k2_d{lbl[0]}")
        I(f"s_add_u32 m0, s26, {buf*K2_STAGE}")
        I("s_nop 0")
        I("global_load_lds_dwordx4 v6, s[12:13]")
        L(f"L_k2_d{lbl[0]}")
        I("s_add_u32 s12, s12, 1024")
        I("s_addc_u32 s13, s13, 0")

    def wait_stage(n):
        if n == 0:
            I("s_waitcnt vmcnt(0)")
            return
        lbl[0] += 1
        I("s_cmp_ge_u32 s6, 4")
        I(f"s_cbranch_scc1 L_k2_w{lbl[0]}")
        I(f"s_waitcnt vmcnt({3*n})")
        L(f"L_k2_w{lbl[0]}")
        I(f"s_waitcnt vmcnt({3*n})" if False else "s_nop 0")

    def frag_reads(st):
        buf = st % K2_NBUF
        fs = FR + (st & 1) * 32
        va, vb = [("v9", "v10"), ("v11", "v12"), ("v13", "v14")][buf >> 1]
        for i in range(4):
            off = i * 1024 + (buf & 1) * K2_STAGE
            I(f"ds_read_b128 v[{fs+4*i}:{fs+4*i+3}], {va} offset:{off}")
            I(f"ds_read_b128 v[{fs+16+4*i}:{fs+16+4*i+3}], {vb} offset:{off}")

    def mfmas(st):
        fs = FR + (st & 1) * 32
        for i in range(4):
            for j in range(4):
                a = ACC + (i * 4 + j) * 4
                c = "0" if st == 0 else f"v[{a}:{a+3}]"
                I(f"v_mfma_f32_16x16x32_bf16 v[{a}:{a+3}], v[{fs+4*i}:{fs+4*i+3}], v[{fs+16+4*j}:{fs+16+4*j+3}], {c}")

    def waitn(n):
        if n == 0:
            I("s_waitcnt vmcnt(0)")
        else:
            lbl[0] += 1
            I("s_cmp_ge_u32 s6, 4")
            I(f"s_cbranch_scc1 L_k2_w{lbl[0]}")
            I(f"s_waitcnt vmcnt({3*n})")
            I(f"s_branch L_k2_x{lbl[0]}")
            L(f"L_k2_w{lbl[0]}")
            I(f"s_waitcnt vmcnt({2*n})")
            L(f"L_k2_x{lbl[0]}")

    for st in range(K2_NBUF - 1):
        issue_dma(st)
    waitn(K2_NBUF - 2)
    I("s_barrier")
    frag_reads(0)
    for st in range(NST):
        if st + 1 < NST:
            waitn(min(K2_NBUF - 3, NST - 2 - st))
            I("s_barrier")
            if st + K2_NBUF - 1 < NST:
                issue_dma(st + K2_NBUF - 1)
            frag_reads(st + 1)
            I("s_waitcnt lgkmcnt(8)")
        else:
            I("s_waitcnt lgkmcnt(0)")
        mfmas(st)
    I("s_nop 7")
    I("s_nop 7")
    I("s_lshl_b32 s20, s4, 4")
    I("s_lshl_b32 s21, s8, 2")
    I("s_add_u32 s20, s20, s21")
    I("s_cmp_lt_u32 s5, 10")
    I("s_cbranch_scc1 L_k2_qkv")
    I("s_sub_u32 s21, s5, 10")
    I("s_mul_i32 s21, s21, 3")
    I("s_add_u32 s21, s21, s7")
    I("s_add_u32 s21, s21, 20")
    I(f"s_mul_i32 s22, s20, {KT2}")
    I("s_add_u32 s22, s22, s21")
    I("s_lshl_b32 s22, s22, 10")
    add64(24, 18, A2P)
    add64s(24, 24, 22)
    for j in range(4):
        for r in range(8):
            g = ACC + ((r >> 2) * 4 + j) * 4 + (r & 3)
            u = ACC + ((2 + (r >> 2)) * 4 + j) * 4 + (r & 3)
            I(f"v_max_f32 v{FR+r}, 0, v{g}")
            I(f"v_mul_f32 v{FR+r}, v{FR+r}, v{u}")
        for d in range(4):
            I(f"v_cvt_pk_bf16_f32 v{FR+8+d}, v{FR+2*d}, v{FR+2*d+1}")
        I(f"global_store_dwordx4 v3, v[{FR+8}:{FR+11}], s[24:25]")
        I(f"s_add_u32 s24, s24, {KT2*1024}")
        I("s_addc_u32 s25, s25, 0")
    I("s_branch L_k2_end")
    L("L_k2_qkv")
    I("v_and_b32 v10, 15, v2")
    I(f"v_mul_u32_u24 v10, {F3*2}, v10")
    I("v_lshrrev_b32 v11, 4, v2")
    I("v_lshlrev_b32 v11, 4, v11")
    I("v_add_u32 v10, v10, v11")
    I(f"s_mul_i32 s22, s20, {16*F3*2}")
    I("s_mul_i32 s21, s5, 384")
    I("s_add_u32 s22, s22, s21")
    I("s_lshl_b32 s21, s7, 7")
    I("s_add_u32 s22, s22, s21")
    add64(24, 18, QKV)
    add64s(24, 24, 22)
    for j in range(4):
        for p in range(2):
            for d in range(4):
                t = 2 * p + (d >> 1)
                a = ACC + (t * 4 + j) * 4 + (d & 1) * 2
                I(f"v_cvt_pk_bf16_f32 v{FR+8*p+d}, v{a}, v{a+1}")
            I(f"global_store_dwordx4 v10, v[{FR+8*p}:{FR+8*p+3}], s[24:25] offset:{64*p}")
        I(f"s_add_u32 s24, s24, {16*F3*2}")
        I("s_addc_u32 s25, s25, 0")
    L("L_k2_end")
    I("s_endpgm")
    kernel_desc(name, FR + 64, 32)


K3_GRID = 256


def gen_k3():
    name = "k3_attn_kernel"
    kernel_header(name)
    I(f"s_cmp_ge_u32 s2, {K3_GRID}")
    I("s_cbranch_scc1 L_k3_end")
    I("s_load_dwordx2 s[18:19], s[0:1], 72")
    I("s_and_b32 s3, s2, 7")
    I("s_lshl_b32 s3, s3, 5")
    I("s_lshr_b32 s4, s2, 3")
    I("s_add_u32 s3, s3, s4")
    I("s_lshl_b32 s3, s3, 8")
    I("v_add_u32 v1, s3, v0")
    I("v_lshrrev_b32 v2, 5, v1")
    I("v_and_b32 v3, 31, v1")
    I("v_mul_u32_u24 v4, 40, v3")
    I(f"v_mul_u32_u24 v5, {F3*2}, v2")
    I("v_add_u32 v5, v5, v4")
    I("s_waitcnt lgkmcnt(0)")
    add64(20, 18, QKV)
    Q = 8
    for t in range(5):
        I(f"global_load_dwordx2 v[{Q+2*t}:{Q+2*t+1}], v5, s[20:21] offset:{8*t}")
    KV = 20
    VV = 100
    for w in range(8):
        I(f"v_subrev_u32 v6, {2*w}, v2")
        I("v_max_i32 v6, 0, v6")
        I(f"v_mul_u32_u24 v6, {F3*2}, v6")
        I("v_add_u32 v6, v6, v4")
        for t in range(5):
            I(f"global_load_dwordx2 v[{KV+10*w+2*t}:{KV+10*w+2*t+1}], v6, s[20:21] offset:{1280+8*t}")
        for t in range(5):
            I(f"global_load_dwordx2 v[{VV+10*w+2*t}:{VV+10*w+2*t+1}], v6, s[20:21] offset:{2560+8*t}")
    LG = 180
    I("s_waitcnt vmcnt(0)")
    for w in range(8):
        I(f"v_dot2_f32_bf16 v{LG+w}, v{Q}, v{KV+10*w}, 0")
        for t in range(1, 10):
            I(f"v_dot2_f32_bf16 v{LG+w}, v{Q+t}, v{KV+10*w+t}, v{LG+w}")
    I("s_mov_b32 s4, 0x3ea52ef5")
    I("v_mov_b32 v7, 0xff7fffff")
    for w in range(8):
        I(f"v_mul_f32 v{LG+w}, s4, v{LG+w}")
        if w > 0:
            I(f"v_cmp_le_u32 vcc, {2*w}, v2")
            I("s_nop 1")
            I(f"v_cndmask_b32 v{LG+w}, v7, v{LG+w}, vcc")
    I(f"v_max3_f32 v6, v{LG}, v{LG+1}, v{LG+2}")
    I(f"v_max3_f32 v6, v6, v{LG+3}, v{LG+4}")
    I(f"v_max3_f32 v6, v6, v{LG+5}, v{LG+6}")
    I(f"v_max_f32 v6, v6, v{LG+7}")
    for w in range(8):
        I(f"v_sub_f32 v{LG+w}, v{LG+w}, v6")
    for w in range(8):
        I(f"v_exp_f32 v{LG+w}, v{LG+w}")
    I("s_nop 0")
    I(f"v_add_f32 v6, v{LG}, v{LG+1}")
    for w in range(2, 8):
        I(f"v_add_f32 v6, v6, v{LG+w}")
    I("v_rcp_f32 v6, v6")
    I("s_nop 0")
    for w in range(8):
        I(f"v_mul_f32 v{LG+w}, v{LG+w}, v6")
    O = 20
    for w in range(8):
        for t in range(10):
            I(f"v_lshlrev_b32 v6, 16, v{VV+10*w+t}")
            I(f"v_and_b32 v7, 0xffff0000, v{VV+10*w+t}")
            if w == 0:
                I(f"v_mul_f32 v{O+2*t}, v{LG}, v6")
                I(f"v_mul_f32 v{O+2*t+1}, v{LG}, v7")
            else:
                I(f"v_fmac_f32 v{O+2*t}, v{LG+w}, v6")
                I(f"v_fmac_f32 v{O+2*t+1}, v{LG+w}, v7")
    for t in range(10):
        I(f"v_cvt_pk_bf16_f32 v{40+t}, v{O+2*t}, v{O+2*t+1}")
    add64(20, 18, A2P)
    I("v_lshrrev_b32 v6, 4, v2")
    I(f"v_mul_u32_u24 v6, {KT2*1024}, v6")
    I("v_and_b32 v7, 15, v2")
    I("v_lshlrev_b32 v7, 4, v7")
    I("v_add_u32 v6, v6, v7")
    I("v_mul_u32_u24 v4, 20, v3")
    for g in range(5):
        I(f"v_add_u32 v7, {4*g}, v4")
        I("v_lshrrev_b32 v50, 5, v7")
        I("v_lshlrev_b32 v50, 10, v50")
        I("v_bfe_u32 v51, v7, 3, 2")
        I("v_lshlrev_b32 v51, 8, v51")
        I("v_add3_u32 v50, v50, v51, v6")
        I("v_and_b32 v51, 4, v7")
        I("v_lshlrev_b32 v51, 1, v51")
        I("v_add_u32 v50, v50, v51")
        I(f"global_store_dwordx2 v50, v[{40+2*g}:{41+2*g}], s[20:21]")
        I("s_nop 1")
    L("L_k3_end")
    I("s_endpgm")
    kernel_desc(name, 192, 32)


K4_GRID = 256
K4_LDS = 4 * 20480
K4_DEPTH = 3


def gen_k4():
    name = "k4_gemm2_kernel"
    kernel_header(name)
    I(f"s_cmp_ge_u32 s2, {K4_GRID}")
    I("s_cbranch_scc1 L_k4_end")
    I("s_load_dwordx2 s[18:19], s[0:1], 72")
    I("s_load_dwordx2 s[20:21], s[0:1], 0")
    I("s_load_dwordx2 s[22:23], s[0:1], 56")
    I("s_bfe_u32 s4, s2, 0x20001")
    I("s_lshl_b32 s4, s4, 3")
    I("s_lshr_b32 s5, s2, 5")
    I("s_add_u32 s4, s4, s5")
    I("s_and_b32 s5, s2, 1")
    I("s_lshl_b32 s5, s5, 2")
    I("s_bfe_u32 s7, s2, 0x20003")
    I("s_add_u32 s5, s5, s7")
    I("v_lshrrev_b32 v1, 6, v0")
    I("v_and_b32 v2, 63, v0")
    I("s_nop 0")
    I("v_readfirstlane_b32 s6, v1")
    I("v_lshlrev_b32 v3, 4, v2")
    for i in range(5):
        I(f"v_add_u32 v{4+i}, {i*KT2*1024}, v3")
    for j in range(4):
        I(f"v_add_u32 v{9+j}, {j*KT2*1024}, v3")
    I("s_waitcnt lgkmcnt(0)")
    I(f"s_mul_i32 s7, s5, {5*KT2}")
    I("s_add_u32 s7, s7, s6")
    I("s_lshl_b32 s7, s7, 10")
    add64(8, 18, W2P)
    add64s(8, 8, 7)
    I(f"s_mul_i32 s7, s4, {4*KT2}")
    I("s_add_u32 s7, s7, s6")
    I("s_lshl_b32 s7, s7, 10")
    add64(10, 18, A2P)
    add64s(10, 10, 7)
    ACC = 16
    FR = 96
    NSTEP = 19

    def loads(t):
        fs = FR + (t % K4_DEPTH) * 36
        for i in range(5):
            I(f"global_load_dwordx4 v[{fs+4*i}:{fs+4*i+3}], v{4+i}, s[8:9]")
        for j in range(4):
            I(f"global_load_dwordx4 v[{fs+20+4*j}:{fs+20+4*j+3}], v{9+j}, s[10:11]")
        I("s_add_u32 s8, s8, 4096")
        I("s_addc_u32 s9, s9, 0")
        I("s_add_u32 s10, s10, 4096")
        I("s_addc_u32 s11, s11, 0")

    def mf(t):
        fs = FR + (t % K4_DEPTH) * 36
        for i in range(5):
            for j in range(4):
                a = ACC + (i * 4 + j) * 4
                c = "0" if t == 0 else f"v[{a}:{a+3}]"
                I(f"v_mfma_f32_16x16x32_bf16 v[{a}:{a+3}], v[{fs+4*i}:{fs+4*i+3}], v[{fs+20+4*j}:{fs+20+4*j+3}], {c}")

    for t in range(K4_DEPTH):
        loads(t)
    for t in range(18):
        rem = min(K4_DEPTH - 1, 17 - t)
        I(f"s_waitcnt vmcnt({9*rem})")
        mf(t)
        if t + K4_DEPTH < 18:
            loads(t + K4_DEPTH)
    I("s_cmp_ge_u32 s6, 2")
    I("s_cbranch_scc1 L_k4_red")
    loads(18)
    I("s_waitcnt vmcnt(0)")
    mf(18)
    L("L_k4_red")
    I("s_nop 7")
    I("s_nop 7")
    I(f"s_mul_i32 s7, s6, 20480")
    I("v_add_u32 v13, s7, v3")
    for t in range(20):
        I(f"ds_write_b128 v13, v[{ACC+4*t}:{ACC+4*t+3}] offset:{1024*t}")
    I("s_waitcnt lgkmcnt(0)")
    I("s_barrier")
    I(f"s_mul_i32 s7, s6, 5120")
    I("v_add_u32 v13, s7, v3")
    I("v_add_u32 v15, 61440, v13")
    for tt in range(5):
        for w in range(4):
            if w < 3:
                I(f"ds_read_b128 v[{ACC+16*tt+4*w}:{ACC+16*tt+4*w+3}], v13 offset:{w*20480+tt*1024}")
            else:
                I(f"ds_read_b128 v[{ACC+16*tt+4*w}:{ACC+16*tt+4*w+3}], v15 offset:{tt*1024}")
    I("v_and_b32 v14, 15, v2")
    I("v_mul_u32_u24 v14, 1280, v14")
    I("v_lshrrev_b32 v15, 4, v2")
    I("v_lshlrev_b32 v15, 3, v15")
    I("v_add_u32 v14, v14, v15")
    I("s_mul_i32 s12, s4, 81920")
    I("s_mul_i32 s13, s5, 160")
    I("s_add_u32 s12, s12, s13")
    RES = 100
    for tt in range(5):
        I(f"s_mul_i32 s13, s6, 5")
        I(f"s_add_u32 s13, s13, {tt}")
        I("s_lshr_b32 s14, s13, 2")
        I("s_and_b32 s15, s13, 3")
        I("s_lshl_b32 s14, s14, 5")
        I("s_mul_i32 s15, s15, 20480")
        I("s_add_u32 s14, s14, s15")
        I("s_add_u32 s14, s14, s12")
        I(f"v_add_u32 v{RES+10+tt}, s14, v14")
        I(f"global_load_dwordx2 v[{RES+2*tt}:{RES+2*tt+1}], v{RES+10+tt}, s[20:21]")
    I("s_waitcnt lgkmcnt(0)")
    for tt in range(5):
        b = ACC + 16 * tt
        for r in range(4):
            I(f"v_add_f32 v{b+r}, v{b+r}, v{b+4+r}")
            I(f"v_add_f32 v{b+8+r}, v{b+8+r}, v{b+12+r}")
        for r in range(4):
            I(f"v_add_f32 v{b+r}, v{b+r}, v{b+8+r}")
    I("s_waitcnt vmcnt(0)")
    for tt in range(5):
        b = ACC + 16 * tt
        for d in range(2):
            I(f"v_lshlrev_b32 v13, 16, v{RES+2*tt+d}")
            I(f"v_and_b32 v15, 0xffff0000, v{RES+2*tt+d}")
            I(f"v_add_f32 v{b+2*d}, v{b+2*d}, v13")
            I(f"v_add_f32 v{b+2*d+1}, v{b+2*d+1}, v15")
        I(f"v_cvt_pk_bf16_f32 v{b+4}, v{b}, v{b+1}")
        I(f"v_cvt_pk_bf16_f32 v{b+5}, v{b+2}, v{b+3}")
        I(f"global_store_dwordx2 v{RES+10+tt}, v[{b+4}:{b+5}], s[22:23]")
    L("L_k4_end")
    I("s_endpgm")
    kernel_desc(name, FR + K4_DEPTH * 36, 32)


header = open("parallel_sum__sliding_local_dilated__glu_gated_reglu__prompt.s.ref").read().split("\n")
hdr = []
for l in header:
    if l.startswith("; Override") or l.startswith("; grid=") or l.startswith("; @launch"):
        continue
    if not l.startswith(";"):
        break
    hdr.append(l)
for l in hdr:
    E(l)
E(f"; @launch kernel=k1_prep_kernel grid=({K1_GRID},1,1) block=(256,1,1) lds=2048")
E(f"; @launch kernel=k2_gemm1_kernel grid=({K2_GRID},1,1) block=({K2_BLOCK},1,1) lds={K2_LDS}")
E(f"; @launch kernel=k3_attn_kernel grid=({K3_GRID},1,1) block=(256,1,1) lds=0")
E(f"; @launch kernel=k4_gemm2_kernel grid=({K4_GRID},1,1) block=(256,1,1) lds={K4_LDS}")
E('.amdgcn_target "amdgcn-amd-amdhsa--gfx950"')
E(".text")
gen_k1()
gen_k2()
gen_k3()
gen_k4()
E('.section .rodata,"a"')
E(".p2align 6")
for d in descs:
    E(".p2align 6")
    E(d)
dst = sys.argv[1] if len(sys.argv) > 1 else "parallel_sum__sliding_local_dilated__glu_gated_reglu__prompt.s"
open(dst, "w").write("\n".join(out) + "\n")
```

```python
import sys
import os
XF = os.environ.get("XF", "")

S, D, F3, FF = 2048, 640, 1920, 1728
KT1 = 20
KT2 = 74
XNP = 0x0
W1P = 0x400000
W2P = 0xC00000
QKV = 0x1000000
A2P = 0x2000000

out = []


def E(s=""):
    out.append(s)


def I(s):
    out.append("    " + s)


def L(s):
    out.append(s + ":")


def kernel_header(name):
    E(".p2align 8")
    E(f".globl {name}")
    E(f".type {name},@function")
    L(name)


descs = []


def kernel_desc(name, vgpr, sgpr=102):
    v = (vgpr + 3) // 4 * 4
    descs.append(f""".amdhsa_kernel {name}
  .amdhsa_next_free_vgpr {vgpr}
  .amdhsa_next_free_sgpr {sgpr}
  .amdhsa_accum_offset {v}
  .amdhsa_group_segment_fixed_size 0
  .amdhsa_kernarg_size 80
  .amdhsa_user_sgpr_count 2
  .amdhsa_user_sgpr_kernarg_segment_ptr 1
  .amdhsa_system_sgpr_workgroup_id_x 1
.end_amdhsa_kernel""")


def add64(sdst, ssrc, imm):
    I(f"s_add_u32 s{sdst}, s{ssrc}, {imm:#x}")
    I(f"s_addc_u32 s{sdst+1}, s{ssrc+1}, 0")


def add64s(sdst, ssrc, sreg):
    I(f"s_add_u32 s{sdst}, s{ssrc}, s{sreg}")
    I(f"s_addc_u32 s{sdst+1}, s{ssrc+1}, 0")


K1_LN = 128
K1_SEG = [
]
K1_GRID = 128 + 80 * 3 + 40 + 108


def repack_body(tag, src_sreg, N, C8, kind, tbase):
    rowb = N * 2
    if kind == "w1":
        I(f"v_cmp_gt_u32 vcc, {C8}, v0")
        I("s_and_saveexec_b64 s[30:31], vcc")
        I(f"s_cbranch_execz L_k1_end")
        I("v_mov_b32 v1, v0")
        I(f"s_mul_i32 s21, s20, {8*rowb}")
        add64s(22, src_sreg, 21)
        I("v_lshlrev_b32 v2, 4, v1")
    else:
        I("v_cmp_gt_u32 vcc, 160, v0")
        I("s_and_saveexec_b64 s[30:31], vcc")
        I(f"s_cbranch_execz L_k1_end")
        I("v_cmp_le_u32 vcc, 80, v0")
        I("s_nop 1")
        I("v_cndmask_b32 v3, 0, 1, vcc")
        I("v_mul_u32_u24 v4, 80, v3")
        I("v_sub_u32 v1, v0, v4")
        I(f"s_mul_i32 s21, s20, {16*rowb}")
        add64s(22, src_sreg, 21)
        I(f"v_mul_u32_u24 v4, {8*rowb}, v3")
        I("v_lshlrev_b32 v2, 4, v1")
        I("v_add_u32 v2, v2, v4")
    for j in range(8):
        I(f"global_load_dwordx4 v[{8+4*j}:{11+4*j}], v2, s[22:23]")
        if j < 7:
            I(f"s_add_u32 s22, s22, {rowb}")
            I("s_addc_u32 s23, s23, 0")
    if kind == "w1":
        mult = 2 if tag == "qkv" else 4
        I("v_lshrrev_b32 v4, 2, v1")
        I(f"v_mul_u32_u24 v4, {mult*KT1*1024}, v4")
        I("v_and_b32 v5, 3, v1")
        I("v_lshlrev_b32 v5, 6, v5")
        I("v_add_u32 v4, v4, v5")
        I(f"v_add_u32 v5, {KT1*1024}, v4")
        I("s_lshr_b32 s21, s20, 2")
        I("s_lshl_b32 s21, s21, 10")
        I("s_and_b32 s24, s20, 3")
        I("s_lshl_b32 s24, s24, 8")
        I("s_add_u32 s21, s21, s24")
        add64(24, 18, W1P + tbase * KT1 * 1024)
        add64s(24, 24, 21)
    else:
        I(f"s_lshl_b32 s21, s20, 1")
        I(f"s_add_u32 s21, s21, {tbase}")
        I("v_add_u32 v6, s21, v3")
        I("v_lshrrev_b32 v4, 1, v1")
        I(f"v_mul_u32_u24 v4, {KT2*1024}, v4")
        I("v_lshrrev_b32 v5, 2, v6")
        I("v_lshlrev_b32 v5, 10, v5")
        I("v_add_u32 v4, v4, v5")
        I("v_and_b32 v5, 3, v6")
        I("v_lshlrev_b32 v5, 8, v5")
        I("v_add_u32 v4, v4, v5")
        I("v_and_b32 v5, 1, v1")
        I("v_lshlrev_b32 v5, 7, v5")
        I("v_add_u32 v4, v4, v5")
        add64(24, 18, W2P)
    I("s_mov_b32 s26, 0x05040100")
    I("s_mov_b32 s27, 0x07060302")
    I("s_waitcnt vmcnt(0)")
    for ci in range(8):
        d, e = ci >> 1, ci & 1
        for dd in range(4):
            r0 = 8 + 4 * (2 * dd) + d
            r1 = 8 + 4 * (2 * dd + 1) + d
            I(f"v_perm_b32 v{40+dd}, v{r1}, v{r0}, s{26+e}")
        if kind == "w1":
            vaddr = "v4" if ci < 4 else "v5"
            I(f"global_store_dwordx4 {vaddr}, v[40:43], s[24:25] offset:{(ci&3)*16}")
        else:
            I(f"global_store_dwordx4 v4, v[40:43], s[24:25] offset:{ci*16}")
        I("s_nop 1")
    I("s_branch L_k1_end")


def gen_k1():
    name = "k1_prep_kernel"
    kernel_header(name)
    I(f"s_cmp_ge_u32 s2, {K1_GRID}")
    I("s_cbranch_scc1 L_k1_end")
    I("s_load_dwordx4 s[4:7], s[0:1], 0")
    I("s_load_dwordx2 s[8:9], s[0:1], 16")
    I("s_load_dwordx4 s[12:15], s[0:1], 32")
    I("s_load_dwordx2 s[16:17], s[0:1], 48")
    I("s_load_dwordx2 s[18:19], s[0:1], 72")
    I("s_waitcnt lgkmcnt(0)")
    I("s_cmp_lt_u32 s2, 128")
    I("s_cbranch_scc1 L_k1_ln")
    I("s_sub_u32 s20, s2, 128")
    I("s_cmp_lt_u32 s20, 80")
    I("s_cbranch_scc1 L_k1_qkv")
    I("s_sub_u32 s20, s20, 80")
    I("s_cmp_lt_u32 s20, 80")
    I("s_cbranch_scc1 L_k1_g")
    I("s_sub_u32 s20, s20, 80")
    I("s_cmp_lt_u32 s20, 80")
    I("s_cbranch_scc1 L_k1_u")
    I("s_sub_u32 s20, s20, 80")
    I("s_cmp_lt_u32 s20, 40")
    I("s_cbranch_scc1 L_k1_wo")
    I("s_sub_u32 s20, s20, 40")
    I("s_branch L_k1_wd")
    L("L_k1_qkv")
    repack_body("qkv", 6, F3, 240, "w1", 0)
    L("L_k1_g")
    repack_body("g", 12, FF, 216, "w1", 120)
    L("L_k1_u")
    repack_body("u", 14, FF, 216, "w1", 122)
    L("L_k1_wo")
    repack_body("wo", 8, D, 80, "w2", 0)
    L("L_k1_wd")
    repack_body("wd", 16, D, 80, "w2", 80)

    L("L_k1_ln")
    I("v_and_b32 v1, 63, v0")
    I("v_lshrrev_b32 v2, 6, v0")
    I("v_and_b32 v3, 15, v1")
    I("v_lshrrev_b32 v4, 4, v1")
    I("v_mul_u32_u24 v5, 1280, v3")
    I("v_mul_u32_u24 v6, 320, v2")
    I("v_add_u32 v5, v5, v6")
    I("v_lshlrev_b32 v6, 4, v4")
    I("v_add_u32 v5, v5, v6")
    I(f"s_mul_i32 s20, s2, {16*1280}")
    add64s(22, 4, 20)
    for t in range(5):
        I(f"global_load_dwordx4 v[{8+4*t}:{11+4*t}], v5, s[22:23] offset:{64*t}")
    I("s_waitcnt vmcnt(0)")
    for t in range(20):
        I(f"v_lshlrev_b32 v{28+2*t}, 16, v{8+t}")
        I(f"v_and_b32 v{29+2*t}, 0xffff0000, v{8+t}")
    I("v_add_f32 v68, v28, v29")
    for t in range(2, 40):
        I(f"v_add_f32 v68, v68, v{28+t}")
    I("v_lshlrev_b32 v6, 6, v3")
    I("v_lshlrev_b32 v7, 4, v2")
    I("v_add_u32 v6, v6, v7")
    I("v_lshlrev_b32 v7, 2, v4")
    I("v_add_u32 v6, v6, v7")
    I("v_lshlrev_b32 v7, 6, v3")
    I("ds_write_b32 v6, v68")
    I("s_waitcnt lgkmcnt(0)")
    I("s_barrier")
    for t in range(4):
        I(f"ds_read_b128 v[{72+4*t}:{75+4*t}], v7 offset:{16*t}")
    I("s_waitcnt lgkmcnt(0)")
    I("v_add_f32 v68, v72, v73")
    for t in range(2, 16):
        I(f"v_add_f32 v68, v68, v{72+t}")
    I("v_mul_f32 v69, 0x3acccccd, v68")
    for t in range(40):
        I(f"v_sub_f32 v{28+t}, v{28+t}, v69")
    I("v_mul_f32 v68, v28, v28")
    for t in range(1, 40):
        I(f"v_fmac_f32 v68, v{28+t}, v{28+t}")
    I("ds_write_b32 v6, v68 offset:1024")
    I("s_waitcnt lgkmcnt(0)")
    I("s_barrier")
    for t in range(4):
        I(f"ds_read_b128 v[{72+4*t}:{75+4*t}], v7 offset:{1024+16*t}")
    I("s_waitcnt lgkmcnt(0)")
    I("v_add_f32 v68, v72, v73")
    for t in range(2, 16):
        I(f"v_add_f32 v68, v68, v{72+t}")
    I("v_mov_b32 v70, 0x3727c5ac")
    I("v_fmac_f32 v70, 0x3acccccd, v68")
    I("v_rsq_f32 v70, v70")
    I("s_nop 1")
    for t in range(40):
        I(f"v_mul_f32 v{28+t}, v{28+t}, v70")
    for t in range(20):
        I(f"v_cvt_pk_bf16_f32 v{8+t}, v{28+2*t}, v{29+2*t}")
    I("v_mul_u32_u24 v5, 5120, v2")
    I("v_lshlrev_b32 v6, 4, v1")
    I("v_add_u32 v5, v5, v6")
    I(f"s_mul_i32 s20, s2, {KT1*1024}")
    add64(22, 18, XNP)
    add64s(22, 22, 20)
    for t in range(4):
        I(f"global_store_dwordx4 v5, v[{8+4*t}:{11+4*t}], s[22:23] offset:{1024*t}")
    I("v_add_u32 v5, 4096, v5")
    I("global_store_dwordx4 v5, v[24:27], s[22:23]")
    L("L_k1_end")
    I("s_endpgm")
    kernel_desc(name, 96, 32)


K2_GRID = 224
K2_NBUF = 5
K2_STAGE = 28 * 1024
K2_LDS = K2_NBUF * K2_STAGE
K2_BLOCK = 768


def gen_k2():
    name = "k2_gemm1_kernel"
    kernel_header(name)
    I(f"s_cmp_ge_u32 s2, {K2_GRID}")
    I("s_cbranch_scc1 L_k2_end")
    if "empty" in XF:
        I("s_branch L_k2_end")
    I("s_load_dwordx2 s[18:19], s[0:1], 72")
    I("s_and_b32 s4, s2, 1")
    I("s_lshl_b32 s4, s4, 2")
    I("s_bfe_u32 s5, s2, 0x20003")
    I("s_add_u32 s4, s4, s5")
    I("s_bfe_u32 s5, s2, 0x20001")
    I("s_mul_i32 s5, s5, 7")
    I("s_lshr_b32 s7, s2, 5")
    I("s_add_u32 s5, s5, s7")
    I("v_lshrrev_b32 v1, 6, v0")
    I("v_and_b32 v2, 63, v0")
    I("s_nop 0")
    I("v_readfirstlane_b32 s6, v1")
    I("v_lshlrev_b32 v3, 4, v2")
    I("s_mul_i32 s8, s6, 43")
    I("s_lshr_b32 s8, s8, 7")
    I("s_mul_i32 s7, s8, 3")
    I("s_sub_u32 s7, s6, s7")
    I(f"s_mul_i32 s10, s5, {12*KT1*1024}")
    I(f"s_add_u32 s10, s10, {W1P:#x}")
    I(f"s_mul_i32 s11, s4, {16*KT1*1024}")
    I(f"s_add_u32 s11, s11, {XNP:#x}")
    for i in range(3):
        I(f"s_add_u32 s12, s6, {12*i}")
        I(f"s_lshl_b32 s{24+i}, s12, 10")
        I("s_cmp_lt_u32 s12, 12")
        I("s_cselect_b32 s13, 0, 12")
        I("s_sub_u32 s13, s12, s13")
        I(f"s_mul_i32 s14, s13, {KT1*1024}")
        I("s_cmp_lt_u32 s12, 12")
        I("s_cselect_b32 s13, s10, s11")
        I("s_add_u32 s14, s14, s13")
        I(f"v_add_u32 v{4+i}, s14, v3")
    I("s_waitcnt lgkmcnt(0)")
    I("s_mov_b32 s12, s18")
    I("s_mov_b32 s13, s19")
    I("s_lshl_b32 s15, s7, 12")
    I("v_add_u32 v9, s15, v3")
    I("s_lshl_b32 s15, s8, 12")
    I("s_add_u32 s15, s15, 12288")
    I("v_add_u32 v10, s15, v3")
    I(f"v_add_u32 v11, {2*K2_STAGE}, v9")
    I(f"v_add_u32 v12, {2*K2_STAGE}, v10")
    I(f"v_add_u32 v13, {4*K2_STAGE}, v9")
    I(f"v_add_u32 v14, {4*K2_STAGE}, v10")
    ACC = 16
    FR = 80
    NST = 20
    lbl = [0]

    def issue_dma(st):
        buf = st % K2_NBUF
        if "nodma" in XF:
            return
        for i in range(2):
            I(f"s_add_u32 m0, s{24+i}, {buf*K2_STAGE}")
            I("s_nop 0")
            I(f"global_load_lds_dwordx4 v{4+i}, s[12:13]")
        lbl[0] += 1
        I("s_cmp_ge_u32 s6, 4")
        I(f"s_cbranch_scc1 L_k2_d{lbl[0]}")
        I(f"s_add_u32 m0, s26, {buf*K2_STAGE}")
        I("s_nop 0")
        I("global_load_lds_dwordx4 v6, s[12:13]")
        L(f"L_k2_d{lbl[0]}")
        I("s_add_u32 s12, s12, 1024")
        I("s_addc_u32 s13, s13, 0")

    def wait_stage(n):
        if n == 0:
            I("s_waitcnt vmcnt(0)")
            return
        lbl[0] += 1
        I("s_cmp_ge_u32 s6, 4")
        I(f"s_cbranch_scc1 L_k2_w{lbl[0]}")
        I(f"s_waitcnt vmcnt({3*n})")
        L(f"L_k2_w{lbl[0]}")
        I(f"s_waitcnt vmcnt({3*n})" if False else "s_nop 0")

    def frag_reads(st):
        buf = st % K2_NBUF
        fs = FR + (st & 1) * 32
        va, vb = [("v9", "v10"), ("v11", "v12"), ("v13", "v14")][buf >> 1]
        for i in range(4):
            off = i * 1024 + (buf & 1) * K2_STAGE
            I(f"ds_read_b128 v[{fs+4*i}:{fs+4*i+3}], {va} offset:{off}")
            I(f"ds_read_b128 v[{fs+16+4*i}:{fs+16+4*i+3}], {vb} offset:{off}")

    def mfmas(st):
        fs = FR + (st & 1) * 32
        if "nomfma" in XF and st > 0:
            return
        for i in range(4):
            for j in range(4):
                a = ACC + (i * 4 + j) * 4
                c = "0" if st == 0 else f"v[{a}:{a+3}]"
                I(f"v_mfma_f32_16x16x32_bf16 v[{a}:{a+3}], v[{fs+4*i}:{fs+4*i+3}], v[{fs+16+4*j}:{fs+16+4*j+3}], {c}")

    def waitn(n):
        if n == 0:
            I("s_waitcnt vmcnt(0)")
        else:
            lbl[0] += 1
            I("s_cmp_ge_u32 s6, 4")
            I(f"s_cbranch_scc1 L_k2_w{lbl[0]}")
            I(f"s_waitcnt vmcnt({3*n})")
            I(f"s_branch L_k2_x{lbl[0]}")
            L(f"L_k2_w{lbl[0]}")
            I(f"s_waitcnt vmcnt({2*n})")
            L(f"L_k2_x{lbl[0]}")

    for st in range(K2_NBUF - 1):
        issue_dma(st)
    waitn(K2_NBUF - 2)
    I("s_barrier")
    frag_reads(0)
    for st in range(NST):
        if st + 1 < NST:
            waitn(min(K2_NBUF - 3, NST - 2 - st))
            I("s_barrier")
            if st + K2_NBUF - 1 < NST:
                issue_dma(st + K2_NBUF - 1)
            frag_reads(st + 1)
            I("s_waitcnt lgkmcnt(8)")
        else:
            I("s_waitcnt lgkmcnt(0)")
        mfmas(st)
    I("s_nop 7")
    I("s_nop 7")
    if "noepi" in XF:
        I("s_branch L_k2_end")
    I("s_lshl_b32 s20, s4, 4")
    I("s_lshl_b32 s21, s8, 2")
    I("s_add_u32 s20, s20, s21")
    I("s_cmp_lt_u32 s5, 10")
    I("s_cbranch_scc1 L_k2_qkv")
    I("s_sub_u32 s21, s5, 10")
    I("s_mul_i32 s21, s21, 3")
    I("s_add_u32 s21, s21, s7")
    I("s_add_u32 s21, s21, 20")
    I(f"s_mul_i32 s22, s20, {KT2}")
    I("s_add_u32 s22, s22, s21")
    I("s_lshl_b32 s22, s22, 10")
    add64(24, 18, A2P)
    add64s(24, 24, 22)
    for j in range(4):
        for r in range(8):
            g = ACC + ((r >> 2) * 4 + j) * 4 + (r & 3)
            u = ACC + ((2 + (r >> 2)) * 4 + j) * 4 + (r & 3)
            I(f"v_max_f32 v{FR+r}, 0, v{g}")
            I(f"v_mul_f32 v{FR+r}, v{FR+r}, v{u}")
        for d in range(4):
            I(f"v_cvt_pk_bf16_f32 v{FR+8+d}, v{FR+2*d}, v{FR+2*d+1}")
        I(f"global_store_dwordx4 v3, v[{FR+8}:{FR+11}], s[24:25]")
        I(f"s_add_u32 s24, s24, {KT2*1024}")
        I("s_addc_u32 s25, s25, 0")
    I("s_branch L_k2_end")
    L("L_k2_qkv")
    I("v_and_b32 v10, 15, v2")
    I(f"v_mul_u32_u24 v10, {F3*2}, v10")
    I("v_lshrrev_b32 v11, 4, v2")
    I("v_lshlrev_b32 v11, 4, v11")
    I("v_add_u32 v10, v10, v11")
    I(f"s_mul_i32 s22, s20, {16*F3*2}")
    I("s_mul_i32 s21, s5, 384")
    I("s_add_u32 s22, s22, s21")
    I("s_lshl_b32 s21, s7, 7")
    I("s_add_u32 s22, s22, s21")
    add64(24, 18, QKV)
    add64s(24, 24, 22)
    for j in range(4):
        for p in range(2):
            for d in range(4):
                t = 2 * p + (d >> 1)
                a = ACC + (t * 4 + j) * 4 + (d & 1) * 2
                I(f"v_cvt_pk_bf16_f32 v{FR+8*p+d}, v{a}, v{a+1}")
            I(f"global_store_dwordx4 v10, v[{FR+8*p}:{FR+8*p+3}], s[24:25] offset:{64*p}")
        I(f"s_add_u32 s24, s24, {16*F3*2}")
        I("s_addc_u32 s25, s25, 0")
    L("L_k2_end")
    I("s_endpgm")
    kernel_desc(name, FR + 64, 32)


K3_GRID = 256


def gen_k3():
    name = "k3_attn_kernel"
    kernel_header(name)
    I(f"s_cmp_ge_u32 s2, {K3_GRID}")
    I("s_cbranch_scc1 L_k3_end")
    I("s_load_dwordx2 s[18:19], s[0:1], 72")
    I("s_and_b32 s3, s2, 7")
    I("s_lshl_b32 s3, s3, 5")
    I("s_lshr_b32 s4, s2, 3")
    I("s_add_u32 s3, s3, s4")
    I("s_lshl_b32 s3, s3, 8")
    I("v_add_u32 v1, s3, v0")
    I("v_lshrrev_b32 v2, 5, v1")
    I("v_and_b32 v3, 31, v1")
    I("v_mul_u32_u24 v4, 40, v3")
    I(f"v_mul_u32_u24 v5, {F3*2}, v2")
    I("v_add_u32 v5, v5, v4")
    I("s_waitcnt lgkmcnt(0)")
    add64(20, 18, QKV)
    Q = 8
    for t in range(5):
        I(f"global_load_dwordx2 v[{Q+2*t}:{Q+2*t+1}], v5, s[20:21] offset:{8*t}")
    KV = 20
    VV = 100
    for w in range(8):
        I(f"v_subrev_u32 v6, {2*w}, v2")
        I("v_max_i32 v6, 0, v6")
        I(f"v_mul_u32_u24 v6, {F3*2}, v6")
        I("v_add_u32 v6, v6, v4")
        for t in range(5):
            I(f"global_load_dwordx2 v[{KV+10*w+2*t}:{KV+10*w+2*t+1}], v6, s[20:21] offset:{1280+8*t}")
        for t in range(5):
            I(f"global_load_dwordx2 v[{VV+10*w+2*t}:{VV+10*w+2*t+1}], v6, s[20:21] offset:{2560+8*t}")
    LG = 180
    I("s_waitcnt vmcnt(0)")
    for w in range(8):
        I(f"v_dot2_f32_bf16 v{LG+w}, v{Q}, v{KV+10*w}, 0")
        for t in range(1, 10):
            I(f"v_dot2_f32_bf16 v{LG+w}, v{Q+t}, v{KV+10*w+t}, v{LG+w}")
    I("s_mov_b32 s4, 0x3ea52ef5")
    I("v_mov_b32 v7, 0xff7fffff")
    for w in range(8):
        I(f"v_mul_f32 v{LG+w}, s4, v{LG+w}")
        if w > 0:
            I(f"v_cmp_le_u32 vcc, {2*w}, v2")
            I("s_nop 1")
            I(f"v_cndmask_b32 v{LG+w}, v7, v{LG+w}, vcc")
    I(f"v_max3_f32 v6, v{LG}, v{LG+1}, v{LG+2}")
    I(f"v_max3_f32 v6, v6, v{LG+3}, v{LG+4}")
    I(f"v_max3_f32 v6, v6, v{LG+5}, v{LG+6}")
    I(f"v_max_f32 v6, v6, v{LG+7}")
    for w in range(8):
        I(f"v_sub_f32 v{LG+w}, v{LG+w}, v6")
    for w in range(8):
        I(f"v_exp_f32 v{LG+w}, v{LG+w}")
    I("s_nop 0")
    I(f"v_add_f32 v6, v{LG}, v{LG+1}")
    for w in range(2, 8):
        I(f"v_add_f32 v6, v6, v{LG+w}")
    I("v_rcp_f32 v6, v6")
    I("s_nop 0")
    for w in range(8):
        I(f"v_mul_f32 v{LG+w}, v{LG+w}, v6")
    O = 20
    for w in range(8):
        for t in range(10):
            I(f"v_lshlrev_b32 v6, 16, v{VV+10*w+t}")
            I(f"v_and_b32 v7, 0xffff0000, v{VV+10*w+t}")
            if w == 0:
                I(f"v_mul_f32 v{O+2*t}, v{LG}, v6")
                I(f"v_mul_f32 v{O+2*t+1}, v{LG}, v7")
            else:
                I(f"v_fmac_f32 v{O+2*t}, v{LG+w}, v6")
                I(f"v_fmac_f32 v{O+2*t+1}, v{LG+w}, v7")
    for t in range(10):
        I(f"v_cvt_pk_bf16_f32 v{40+t}, v{O+2*t}, v{O+2*t+1}")
    add64(20, 18, A2P)
    I("v_lshrrev_b32 v6, 4, v2")
    I(f"v_mul_u32_u24 v6, {KT2*1024}, v6")
    I("v_and_b32 v7, 15, v2")
    I("v_lshlrev_b32 v7, 4, v7")
    I("v_add_u32 v6, v6, v7")
    I("v_mul_u32_u24 v4, 20, v3")
    for g in range(5):
        I(f"v_add_u32 v7, {4*g}, v4")
        I("v_lshrrev_b32 v50, 5, v7")
        I("v_lshlrev_b32 v50, 10, v50")
        I("v_bfe_u32 v51, v7, 3, 2")
        I("v_lshlrev_b32 v51, 8, v51")
        I("v_add3_u32 v50, v50, v51, v6")
        I("v_and_b32 v51, 4, v7")
        I("v_lshlrev_b32 v51, 1, v51")
        I("v_add_u32 v50, v50, v51")
        I(f"global_store_dwordx2 v50, v[{40+2*g}:{41+2*g}], s[20:21]")
        I("s_nop 1")
    L("L_k3_end")
    I("s_endpgm")
    kernel_desc(name, 192, 32)


K4_GRID = 256
K4_LDS = 4 * 20480
K4_DEPTH = 4


def gen_k4():
    name = "k4_gemm2_kernel"
    kernel_header(name)
    I(f"s_cmp_ge_u32 s2, {K4_GRID}")
    I("s_cbranch_scc1 L_k4_end")
    I("s_load_dwordx2 s[18:19], s[0:1], 72")
    I("s_load_dwordx2 s[20:21], s[0:1], 0")
    I("s_load_dwordx2 s[22:23], s[0:1], 56")
    I("s_bfe_u32 s4, s2, 0x20001")
    I("s_lshl_b32 s4, s4, 3")
    I("s_lshr_b32 s5, s2, 5")
    I("s_add_u32 s4, s4, s5")
    I("s_and_b32 s5, s2, 1")
    I("s_lshl_b32 s5, s5, 2")
    I("s_bfe_u32 s7, s2, 0x20003")
    I("s_add_u32 s5, s5, s7")
    I("v_lshrrev_b32 v1, 6, v0")
    I("v_and_b32 v2, 63, v0")
    I("s_nop 0")
    I("v_readfirstlane_b32 s6, v1")
    I("v_lshlrev_b32 v3, 4, v2")
    for i in range(5):
        I(f"v_add_u32 v{4+i}, {i*KT2*1024}, v3")
    for j in range(4):
        I(f"v_add_u32 v{9+j}, {j*KT2*1024}, v3")
    I("s_waitcnt lgkmcnt(0)")
    I(f"s_mul_i32 s7, s5, {5*KT2}")
    I("s_add_u32 s7, s7, s6")
    I("s_lshl_b32 s7, s7, 10")
    add64(8, 18, W2P)
    add64s(8, 8, 7)
    I(f"s_mul_i32 s7, s4, {4*KT2}")
    I("s_add_u32 s7, s7, s6")
    I("s_lshl_b32 s7, s7, 10")
    add64(10, 18, A2P)
    add64s(10, 10, 7)
    ACC = 16
    FR = 96
    NSTEP = 19

    def loads(t):
        fs = FR + (t % K4_DEPTH) * 36
        for i in range(5):
            I(f"global_load_dwordx4 v[{fs+4*i}:{fs+4*i+3}], v{4+i}, s[8:9]")
        for j in range(4):
            I(f"global_load_dwordx4 v[{fs+20+4*j}:{fs+20+4*j+3}], v{9+j}, s[10:11]")
        I("s_add_u32 s8, s8, 4096")
        I("s_addc_u32 s9, s9, 0")
        I("s_add_u32 s10, s10, 4096")
        I("s_addc_u32 s11, s11, 0")

    def mf(t):
        fs = FR + (t % K4_DEPTH) * 36
        for i in range(5):
            for j in range(4):
                a = ACC + (i * 4 + j) * 4
                c = "0" if t == 0 else f"v[{a}:{a+3}]"
                I(f"v_mfma_f32_16x16x32_bf16 v[{a}:{a+3}], v[{fs+4*i}:{fs+4*i+3}], v[{fs+20+4*j}:{fs+20+4*j+3}], {c}")

    for t in range(K4_DEPTH):
        loads(t)
    for t in range(18):
        rem = min(K4_DEPTH - 1, 17 - t)
        I(f"s_waitcnt vmcnt({9*rem})")
        mf(t)
        if t + K4_DEPTH < 18:
            loads(t + K4_DEPTH)
    I("s_cmp_ge_u32 s6, 2")
    I("s_cbranch_scc1 L_k4_red")
    loads(18)
    I("s_waitcnt vmcnt(0)")
    mf(18)
    L("L_k4_red")
    I("s_nop 7")
    I("s_nop 7")
    I(f"s_mul_i32 s7, s6, 20480")
    I("v_add_u32 v13, s7, v3")
    for t in range(20):
        I(f"ds_write_b128 v13, v[{ACC+4*t}:{ACC+4*t+3}] offset:{1024*t}")
    I("s_waitcnt lgkmcnt(0)")
    I("s_barrier")
    I(f"s_mul_i32 s7, s6, 5120")
    I("v_add_u32 v13, s7, v3")
    I("v_add_u32 v15, 61440, v13")
    for tt in range(5):
        for w in range(4):
            if w < 3:
                I(f"ds_read_b128 v[{ACC+16*tt+4*w}:{ACC+16*tt+4*w+3}], v13 offset:{w*20480+tt*1024}")
            else:
                I(f"ds_read_b128 v[{ACC+16*tt+4*w}:{ACC+16*tt+4*w+3}], v15 offset:{tt*1024}")
    I("v_and_b32 v14, 15, v2")
    I("v_mul_u32_u24 v14, 1280, v14")
    I("v_lshrrev_b32 v15, 4, v2")
    I("v_lshlrev_b32 v15, 3, v15")
    I("v_add_u32 v14, v14, v15")
    I("s_mul_i32 s12, s4, 81920")
    I("s_mul_i32 s13, s5, 160")
    I("s_add_u32 s12, s12, s13")
    RES = 100
    for tt in range(5):
        I(f"s_mul_i32 s13, s6, 5")
        I(f"s_add_u32 s13, s13, {tt}")
        I("s_lshr_b32 s14, s13, 2")
        I("s_and_b32 s15, s13, 3")
        I("s_lshl_b32 s14, s14, 5")
        I("s_mul_i32 s15, s15, 20480")
        I("s_add_u32 s14, s14, s15")
        I("s_add_u32 s14, s14, s12")
        I(f"v_add_u32 v{RES+10+tt}, s14, v14")
        I(f"global_load_dwordx2 v[{RES+2*tt}:{RES+2*tt+1}], v{RES+10+tt}, s[20:21]")
    I("s_waitcnt lgkmcnt(0)")
    for tt in range(5):
        b = ACC + 16 * tt
        for r in range(4):
            I(f"v_add_f32 v{b+r}, v{b+r}, v{b+4+r}")
            I(f"v_add_f32 v{b+8+r}, v{b+8+r}, v{b+12+r}")
        for r in range(4):
            I(f"v_add_f32 v{b+r}, v{b+r}, v{b+8+r}")
    I("s_waitcnt vmcnt(0)")
    for tt in range(5):
        b = ACC + 16 * tt
        for d in range(2):
            I(f"v_lshlrev_b32 v13, 16, v{RES+2*tt+d}")
            I(f"v_and_b32 v15, 0xffff0000, v{RES+2*tt+d}")
            I(f"v_add_f32 v{b+2*d}, v{b+2*d}, v13")
            I(f"v_add_f32 v{b+2*d+1}, v{b+2*d+1}, v15")
        I(f"v_cvt_pk_bf16_f32 v{b+4}, v{b}, v{b+1}")
        I(f"v_cvt_pk_bf16_f32 v{b+5}, v{b+2}, v{b+3}")
        I(f"global_store_dwordx2 v{RES+10+tt}, v[{b+4}:{b+5}], s[22:23]")
    L("L_k4_end")
    I("s_endpgm")
    kernel_desc(name, FR + K4_DEPTH * 36, 32)


header = open("parallel_sum__sliding_local_dilated__glu_gated_reglu__prompt.s.ref").read().split("\n")
hdr = []
for l in header:
    if l.startswith("; Override") or l.startswith("; grid=") or l.startswith("; @launch"):
        continue
    if not l.startswith(";"):
        break
    hdr.append(l)
for l in hdr:
    E(l)
E(f"; @launch kernel=k1_prep_kernel grid=({K1_GRID},1,1) block=(256,1,1) lds=2048")
E(f"; @launch kernel=k2_gemm1_kernel grid=({K2_GRID},1,1) block=({K2_BLOCK},1,1) lds={K2_LDS}")
E(f"; @launch kernel=k3_attn_kernel grid=({K3_GRID},1,1) block=(256,1,1) lds=0")
E(f"; @launch kernel=k4_gemm2_kernel grid=({K4_GRID},1,1) block=(256,1,1) lds={K4_LDS}")
E('.amdgcn_target "amdgcn-amd-amdhsa--gfx950"')
E(".text")
gen_k1()
gen_k2()
gen_k3()
gen_k4()
E('.section .rodata,"a"')
E(".p2align 6")
for d in descs:
    E(".p2align 6")
    E(d)
dst = sys.argv[1] if len(sys.argv) > 1 else "parallel_sum__sliding_local_dilated__glu_gated_reglu__prompt.s"
open(dst, "w").write("\n".join(out) + "\n")
```
